```python
import torch

def _softmax(x, axis=-1):
    return torch.softmax(x, dim=axis)

def _gelu(x):
    return torch.nn.functional.gelu(x, approximate='tanh')

def _silu(x):
    return torch.nn.functional.silu(x)

def _sigmoid(x):
    return torch.sigmoid(x)

def _layernorm(x, axis=-1, eps=1e-05):
    m = x.mean(dim=axis, keepdim=True)
    v = x.var(dim=axis, keepdim=True, unbiased=False)
    return (x - m) / torch.sqrt(v + eps)

def _scatter_add(tgt, idx, src, axis=0):
    return tgt.clone().index_add_(axis, idx, src)

def _segment_sum(src, seg, n):
    out = torch.zeros((n,) + src.shape[1:], dtype=src.dtype)
    return out.index_add_(0, seg, src)

def _pad(x, pw):
    flat = tuple((v for pair in reversed(pw) for v in pair))
    return torch.nn.functional.pad(x, flat)
kernel_name = 'gated_mix__memory_aug_recurrent_mem_tr__grouped_kv_mqa__prompt'

def setup_inputs():

    _w = lambda a: (lambda t: t.to(torch.bfloat16) if t.is_floating_point() else t)(torch.as_tensor(a))

    def _A_setup():
        B, S, Dm = (1, 2048, 1024)
        H, Dh = (32, 128)
        M, seg = (8, 32)
        seg = min(seg, S)
        S = S // seg * seg
        return {'x': _w((lambda *s: torch.randn(*s, dtype=torch.bfloat16) * 0.05)(B, S, Dm)), 'mem0': _w((lambda *s: torch.randn(*s, dtype=torch.bfloat16) * 0.4)(B, M, Dm)), 'Wq': _w((lambda *s: torch.randn(*s, dtype=torch.bfloat16) * 6.4)(Dm, H, Dh) * Dm ** (-0.5)), 'Wk': _w((lambda *s: torch.randn(*s, dtype=torch.bfloat16) * 6.4)(Dm, H, Dh) * Dm ** (-0.5)), 'Wv': _w((lambda *s: torch.randn(*s, dtype=torch.bfloat16) * 0.4)(Dm, H, Dh) * Dm ** (-0.5)), 'Wo': _w((lambda *s: torch.randn(*s, dtype=torch.bfloat16) * 0.4)(H, Dh, Dm) * (H * Dh) ** (-0.5)), 'seg_len': seg}
    _A_in = _A_setup()

    def _B_setup():
        B, S, D, H = (1, 2048, 1024, 32)
        Dh = D // H
        return {'x': _w((lambda *s: torch.randn(*s, dtype=torch.bfloat16) * 0.05)(B, S, D)), 'wq': _w((lambda *s: torch.randn(*s, dtype=torch.bfloat16) * 0.8)(D, H * Dh)), 'wk': _w((lambda *s: torch.randn(*s, dtype=torch.bfloat16) * 0.8)(D, Dh)), 'wv': _w((lambda *s: torch.randn(*s, dtype=torch.bfloat16) * 0.05)(D, Dh)), 'wo': _w((lambda *s: torch.randn(*s, dtype=torch.bfloat16) * 0.05)(H * Dh, D))}
    _B_in = _B_setup()
    return {'A_x': _A_in['x'], 'A_mem0': _A_in['mem0'], 'A_Wq': _A_in['Wq'], 'A_Wk': _A_in['Wk'], 'A_Wv': _A_in['Wv'], 'A_Wo': _A_in['Wo'], 'A_seg_len': _A_in['seg_len'], 'B_x': _B_in['x'], 'B_wq': _B_in['wq'], 'B_wk': _B_in['wk'], 'B_wv': _B_in['wv'], 'B_wo': _B_in['wo'], 'gate_w': _w((lambda *s: torch.randn(*s, dtype=torch.bfloat16) * 0.05)(1024) * 16.0)}

def reference(A_x, A_mem0, A_Wq, A_Wk, A_Wv, A_Wo, A_seg_len, B_x, B_wq, B_wk, B_wv, B_wo, gate_w):

    def _A_ref(x, mem0, Wq, Wk, Wv, Wo, seg_len):
        B, S, Dm = x.shape
        H, Dh = (Wq.shape[1], Wq.shape[2])
        M = mem0.shape[1]
        scale = Dh ** (-0.5)
        n_seg = S // seg_len
        L = M + seg_len
        idx = torch.arange(L)
        mask = (idx[:, None] < M) | (idx[:, None] >= idx[None, :])
        mem = mem0
        outs = []
        for s in range(n_seg):
            xs = x[:, s * seg_len:(s + 1) * seg_len, :].clone()
            h = torch.concatenate([mem, xs], axis=1)
            q = torch.einsum('btd,dhe->bhte', h, Wq)
            k = torch.einsum('btd,dhe->bhte', h, Wk)
            v = torch.einsum('btd,dhe->bhte', h, Wv)
            scores = torch.einsum('bhqe,bhke->bhqk', q, k) * scale
            scores = torch.where(mask[None, None], scores, -1000000000.0)
            p = _softmax(scores, axis=-1)
            o = torch.einsum('bhqk,bhke->bhqe', p, v)
            o = torch.einsum('bhte,hed->btd', o, Wo)
            mem = o[:, :M, :].clone()
            outs.append(o[:, M:, :])
        return torch.concatenate(outs, axis=1)

    def _B_ref(x, wq, wk, wv, wo):
        B, S, D = x.shape
        H = 32
        Dh = D // H
        q = (lambda x, *d: x.permute(*d))((x @ wq).reshape(B, S, H, Dh), 0, 2, 1, 3)
        k = x @ wk
        v = x @ wv
        scores = torch.einsum('bhqd,bkd->bhqk', q, k) * Dh ** (-0.5)
        p = _softmax(scores, axis=-1)
        o = torch.einsum('bhqk,bkd->bhqd', p, v)
        return (lambda x, *d: x.permute(*d))(o, 0, 2, 1, 3).reshape(B, S, H * Dh) @ wo
    x = A_x
    g = _sigmoid((x * gate_w).sum(-1, keepdims=True))
    a = _A_ref(x, A_mem0, A_Wq, A_Wk, A_Wv, A_Wo, A_seg_len)
    b = _B_ref(x, B_wq, B_wk, B_wv, B_wo)
    return g * a + (1 - g) * b
```

```python
from common import *
sID, sW, sFAST, sS, sCH, sT0, sT1, sT2, sX_, sM, sH, sJ, sKO, sVO, sSPIN, sKMO, sVMO, sLO, sXO, sOO, sSCO, sPL, sPX = range(64, 87)
SC_C = 128 ** -0.5 * 1.4426950408889634
import struct
def f2u(x): return struct.unpack("<I", struct.pack("<f", x))[0]
L_MEMB, L_QK, L_RED = 131072, 147456, 149504
DELAY_A, DELAY_C, DELAY_E, DELAY_L, PF_LATE = 7, 11, 6, 0, 0
DBG = 0
SWAVE = 3
def st(e, ins):
    a, b = e.lab("Ls"), e.lab("Ls")
    e(f"s_cmp_eq_u32 s{sFAST}, 0\ns_cbranch_scc1 {a}\n{ins}\ns_branch {b}\n{a}:\n{ins} sc1\n{b}:")
def check(e, regs, extra):
    n = len(regs)
    for i, r in enumerate(regs):
        e(f"s_waitcnt vmcnt({n-1-i+extra})")
        if i == 0: e(f"v_max3_u32 v9, v{r}, v{r+1}, v{r+2}\nv_max_u32 v9, v9, v{r+3}")
        else: e(f"v_max3_u32 v9, v9, v{r}, v{r+1}\nv_max3_u32 v9, v9, v{r+2}, v{r+3}")
    e("v_cmp_eq_u32 vcc, -1, v9")
def poll(e, loads, regs, pre=None, extra=0, issued=False):
    a, b = e.lab("Lp"), e.lab("Lp")
    if not issued:
        for l in loads: e(l)
    if pre: pre()
    check(e, regs, extra)
    e(f"s_cbranch_vccz {b}\ns_mov_b32 s{sSPIN}, 0\n{a}:")
    for l in loads: e(l)
    e(f"s_add_u32 s{sSPIN}, s{sSPIN}, 1\ns_add_u32 s87, s87, 1")
    check(e, regs, 0)
    e(f"s_cmp_gt_u32 s{sSPIN}, 0x40000\ns_cbranch_scc1 {b}\ns_cbranch_vccnz {a}\n{b}:")
def wait_counter(e, idx_sgpr_expr, target):
    a, b = e.lab("Lw"), e.lab("Lw")
    e(f"s_mov_b32 s{sSPIN}, 0\nv_mov_b32 v9, 0\n{a}:\nbuffer_load_dword v10, v9, {srd(SDBG)}, {idx_sgpr_expr} offen sc1\ns_waitcnt vmcnt(0)")
    e(f"v_readfirstlane_b32 s{sT2}, v10\ns_add_u32 s{sSPIN}, s{sSPIN}, 1\ns_cmp_gt_u32 s{sSPIN}, 0x40000\ns_cbranch_scc1 {b}\ns_cmp_ge_u32 s{sT2}, {target}\ns_cbranch_scc1 {b}\ns_sleep 2\ns_branch {a}\n{b}:")
SMAP = {0: 0, 1: 1, 2: 2, 3: 3, 4: 4, 5: 5}
def stamp(e, k, on):
    k = SMAP.get(k)
    if on and k is not None: e(f"s_memtime s[{88+2*k}:{89+2*k}]")

def gen_chain(e, stamps=False):
    WQ = lambda t, c: f"a[{(t*16+c)*8}:{(t*16+c)*8+7}]" if t < 2 else f"v[{128+c*8}:{128+c*8+7}]"
    e(f"""s_lshr_b32 s{sX_}, s{sID}, 5
    s_and_b32 s{sM}, s{sID}, 31
    s_lshr_b32 s{sH}, s{sID}, 1
    s_and_b32 s{sJ}, s{sID}, 1
    v_lshlrev_b32 v2, 4, v0
    v_and_b32 v10, 15, v0
    v_lshrrev_b32 v11, 4, v0
    v_and_b32 v12, 7, v0
    v_bfe_u32 v13, v0, 3, 1""")
    e(f"""v_lshrrev_b32 v14, 3, v0
    v_lshrrev_b32 v15, 5, v0
    s_and_b32 s{sT0}, s{sW}, 2
    v_add_u32 v15, s{sT0}, v15
    v_lshlrev_b32 v15, 1, v15
    v_xor_b32 v15, v15, v12
    v_lshlrev_b32 v15, 4, v15
    v_lshl_add_u32 v14, v14, 13, v15
    s_lshl_b32 s{sT0}, s{sID}, 7
    s_lshl_b32 s{sT1}, s{sW}, 16
    s_add_u32 s{sT0}, s{sT0}, s{sT1}
    v_add_u32 v14, s{sT0}, v14
    v_lshrrev_b32 v16, 2, v0
    v_and_b32 v15, 3, v0
    v_lshlrev_b32 v15, 4, v15
    v_lshl_add_u32 v16, v16, 11, v15
    s_lshl_b32 s{sT0}, s{sX_}, 22
    s_lshl_b32 s{sT1}, s{sW}, 20
    s_add_u32 s{sT0}, s{sT0}, s{sT1}
    s_lshl_b32 s{sT1}, s{sM}, 6
    s_add_u32 s{sT0}, s{sT0}, s{sT1}
    v_add_u32 v16, s{sT0}, v16""")
    e(f"""v_lshrrev_b32 v17, 1, v11
    v_lshlrev_b32 v17, 4, v17
    v_and_b32 v18, 1, v11
    v_lshl_add_u32 v17, v18, 2, v17
    v_lshl_add_u32 v17, v13, 3, v17
    v_bfe_u32 v18, v0, 2, 1
    v_add_u32 v17, v17, v18
    v_and_b32 v19, 3, v0
    v_lshlrev_b32 v19, 3, v19
    v_lshl_add_u32 v20, v17, 6, v19
    s_lshl_b32 s{sT0}, s{sW}, 13
    v_add_u32 v20, s{sT0}, v20
    v_and_b32 v18, 1, v11
    v_lshrrev_b32 v17, 1, v11
    v_lshlrev_b32 v17, 3, v17
    v_lshl_add_u32 v17, v18, 4, v17
    v_lshl_add_u32 v17, v13, 2, v17
    v_bfe_u32 v21, v0, 2, 1
    v_add_u32 v17, v17, v21
    v_lshl_add_u32 v18, v18, 1, v13
    v_xor_b32 v18, s{sW}, v18
    v_lshl_add_u32 v18, v18, 5, v19
    v_lshl_add_u32 v18, v17, 7, v18""")
    for t in range(4): e(f"s_add_u32 s{sT0}, s{sW}, {t}\ns_and_b32 s{sT0}, s{sT0}, 3\ns_lshl_b32 s{sT0}, s{sT0}, 13\nv_add_u32 v{24+t}, s{sT0}, v18")
    slot = lambda b: (3 + b) % 5 if b < 12 else b - 12
    def issue(b):
        if b < 12:
            S = [SWQ, SWK, SWV][b // 4]
            for blk in range(4):
                for i in range(2):
                    e(f"s_lshl_b32 s{sT0}, s{sW}, 10\ns_add_u32 m0, s{sT0}, {slot(b)*32768 + blk*8192 + i*4096}")
                    e(f"s_mov_b32 s{sT1}, {((b%4)*4+blk)*64*8192 + i*32*8192}\nbuffer_load_dwordx4 v14, {srd(S)}, s{sT1} offen lds")
        else:
            for cc in range(2):
                for i in range(4):
                    e(f"s_lshl_b32 s{sT0}, s{sW}, 13\ns_add_u32 m0, s{sT0}, {slot(b)*32768 + cc*4096 + i*1024}")
                    e(f"s_mov_b32 s{sT1}, {((b-12)*2+cc)*64*2048 + i*16*2048}\nbuffer_load_dwordx4 v16, {srd(SWO)}, s{sT1} offen lds")
    for b in range(4): issue(b)
    for b in range(16):
        e(f"s_waitcnt vmcnt({8*min(3, 15-b)})\ns_barrier")
        if b + 4 < 16: issue(b + 4)
        e(f"s_mov_b32 s{sT0}, {slot(b)*32768}")
        if b < 12:
            t = b // 4
            for blk in range(4):
                c = (b % 4) * 4 + blk
                e(f"v_add_u32 v21, s{sT0}, v{24+blk}")
                for hf in range(2):
                    for jj in range(2):
                        base = (t * 16 + c) * 8 if t < 2 else 128 + c * 8
                        r = base + 4 * hf + 2 * jj
                        e(f"ds_read_b64_tr_b16 {'a' if t < 2 else 'v'}[{r}:{r+1}], v21 offset:{hf*4096 + jj*256}")
            e("s_waitcnt lgkmcnt(0)")
        else:
            e(f"v_add_u32 v21, s{sT0}, v20\ns_lshl_b32 s{sT1}, s{sW}, 13\ns_add_u32 s{sT0}, s{sT0}, s{sT1}\nv_add_u32 v22, s{sT0}, v2")
            for cc in range(2):
                for tl in range(2):
                    for hf in range(2):
                        for jj in range(2):
                            r = 32 + cc * 16 + tl * 8 + 4 * hf + 2 * jj
                            e(f"ds_read_b64_tr_b16 v[{r}:{r+1}], v21 offset:{cc*4096 + hf*2048 + jj*128 + tl*32}")
            e("s_waitcnt lgkmcnt(0)")
            for q in range(8): e(f"ds_write_b128 v22, v[{32+4*q}:{35+4*q}] offset:{q*1024}")
            e("s_waitcnt lgkmcnt(0)")
    tmark(e, 11)
    e(f"""s_cmp_lg_u32 s90, 2
    s_cbranch_scc1 L_ch_const
    s_mov_b32 s90, 3
    s_branch L_role_all
    L_ch_const:
    v_lshlrev_b32 v2, 4, v0
    v_and_b32 v10, 15, v0
    v_lshrrev_b32 v11, 4, v0""")
    e(f"""v_and_b32 v14, 1, v11
    v_lshrrev_b32 v15, 5, v0
    v_lshl_add_u32 v30, v15, 4, v10
    v_lshlrev_b32 v1, 4, v30
    v_lshl_add_u32 v30, v14, 3, v1
    s_lshl_b32 s{sT0}, s{sW}, 10
    s_add_u32 s{sT1}, s{sT0}, {L_MEMB}
    v_add_u32 v30, s{sT1}, v30
    s_lshl_b32 s{sT2}, s{sX_}, 14
    s_add_u32 s{sT0}, s{sT0}, s{sT2}
    s_xor_b32 s{sT2}, s{sT0}, 0x4000
    s_add_u32 s{sT2}, s{sT2}, {CH_MEMX}
    v_mov_b32 v16, s{sT0}
    v_mov_b32 v17, s{sT2}
    v_cmp_eq_u32 vcc, 1, v14
    s_lshl_b32 s{sPL}, s{sID}, 9
    s_sub_u32 s{sPL}, s{sPL}, s{sT1}
    v_add_u32 v1, v2, v16
    s_add_u32 s{sPX}, s{sPL}, {CH_MEMX}
    v_mov_b32 v3, 0x4444
    v_mov_b32 v16, 0xeeee
    v_cmp_eq_u32 vcc, 1, v13
    s_lshl_b32 s{sT0}, s{sJ}, 7
    s_nop 0
    v_cndmask_b32 v3, v3, v16, vcc
    v_lshlrev_b32 v4, 8, v11
    v_lshl_add_u32 v4, v10, 4, v4
    v_add_u32 v4, s{sT0}, v4
    v_lshlrev_b32 v5, 7, v15
    v_lshl_add_u32 v5, v10, 4, v5
    v_lshl_add_u32 v5, v14, 3, v5
    v_lshlrev_b32 v24, 4, v10
    v_lshl_add_u32 v24, v14, 3, v24
    v_lshl_add_u32 v24, v15, 10, v24
    s_lshl_b32 s{sT0}, s{sW}, 8
    s_add_u32 s{sT0}, s{sT0}, {L_QK}
    v_add_u32 v24, s{sT0}, v24
    v_bfe_u32 v17, v0, 2, 2
    v_lshl_add_u32 v25, v11, 3, v17
    v_lshlrev_b32 v25, 4, v25
    v_and_b32 v18, 1, v0
    v_lshl_add_u32 v25, v18, 3, v25
    v_add_u32 v25, {L_QK}, v25
    v_mov_b32 v29, 0
    v_mov_b32 v16, 0xff000000
    v_cmp_lt_u32 vcc, 31, v0
    s_lshl_b32 s{sT0}, s{sW}, 13
    v_add_u32 v31, s{sT0}, v2
    v_cndmask_b32 v29, v29, v16, vcc
    v_lshl_add_u32 v19, v15, 5, v17
    v_lshl_add_u32 v19, v14, 3, v19
    v_bfe_u32 v16, v0, 1, 1
    v_lshl_add_u32 v19, v16, 2, v19
    v_lshlrev_b32 v19, 4, v19
    v_lshl_add_u32 v19, v18, 3, v19
    v_mov_b32 v50, 0
    v_mov_b32 v51, 0
    v_mov_b32 v28, 128
    s_mov_b32 s87, 0""")
    TA = [0, 8, 26, 27]
    e(f"""v_lshrrev_b32 v16, 3, v0
    v_lshlrev_b32 v17, 11, v12
    v_lshl_add_u32 v17, v16, 4, v17
    s_lshl_b32 s{sT0}, s{sW}, 9
    s_lshl_b32 s{sT1}, s{sW}, 12
    s_add_u32 s{sT1}, s{sT1}, {L_MEMB}
    v_lshlrev_b32 v16, 7, v16
    v_lshl_add_u32 v16, v12, 1, v16
    v_add_u32 v16, s{sT1}, v16""")
    for c in range(4): e(f"buffer_load_dwordx4 v[{64+4*c}:{67+4*c}], v17, {srd(SMEM0)}, s{sT0} offen offset:{128*c}")
    e("s_waitcnt vmcnt(0)")
    for c in range(4):
        for d in range(4): e(f"ds_write_b16 v16, v{64+4*c+d} offset:{1024*c+32*d}\nds_write_b16_d16_hi v16, v{64+4*c+d} offset:{1024*c+32*d+16}")
    for t in range(4): e(f"s_add_u32 s{sT0}, s{sW}, {t}\ns_and_b32 s{sT0}, s{sT0}, 3\ns_lshl_b32 s{sT0}, s{sT0}, 10\ns_add_u32 s{sT0}, s{sT0}, {L_MEMB}\nv_add_u32 v{TA[t]}, s{sT0}, v19")
    e("v_add_u32 v11, 0x10000, v31")
    for d in range(4):
        m = 0
        for l in range(64):
            if (l >> 4) == ((l >> 3) & 1) and ((l & 7) >> 1) == d: m |= 1 << l
        e(f"s_mov_b32 s{32+2*d}, {m & 0xffffffff}\ns_mov_b32 s{33+2*d}, {m >> 32}")
    e(f"""s_mov_b32 s40, 0xaaaaaaaa
    s_mov_b32 s41, 0xaaaaaaaa
    s_mov_b32 s42, {f2u(SC_C)}
    s_mov_b32 s43, {f2u(SC_C)}
    s_lshl_b32 s{sT0}, s{sID}, 13
    s_lshl_b32 s{sT1}, s{sW}, 11
    s_add_u32 s{sKO}, s{sT0}, s{sT1}
    s_lshl_b32 s{sT1}, s{sW}, 10
    s_add_u32 s{sVO}, s{sT0}, s{sT1}
    s_add_u32 s{sVO}, s{sVO}, 4096
    s_lshl_b32 s{sKMO}, s{sID}, 11
    s_add_u32 s{sKMO}, s{sKMO}, {KM}
    s_lshl_b32 s{sT0}, s{sID}, 2
    s_add_u32 s{sT0}, s{sT0}, s{sW}
    s_lshl_b32 s{sVMO}, s{sW}, 8
    s_add_u32 s{sVMO}, s{sVMO}, s{sKMO}
    s_add_u32 s{sVMO}, s{sVMO}, 1024
    s_lshl_b32 s{sLO}, s{sT0}, 8
    s_add_u32 s{sLO}, s{sLO}, {CH_O}
    s_lshl_b32 s{sT0}, s{sX_}, 15
    s_lshl_b32 s{sT1}, s{sW}, 13
    s_add_u32 s{sOO}, s{sT0}, s{sT1}
    s_add_u32 s{sOO}, s{sOO}, {CH_O}
    s_mul_i32 s{sSCO}, s{sH}, 3072
    s_add_u32 s{sSCO}, s{sSCO}, {CH_SC}
    s_lshl_b32 s{sXO}, s{sW}, 10
    s_add_u32 s{sXO}, s{sXO}, s{sSCO}
    s_mov_b32 s{sS}, 0
    s_mov_b32 s4, 0x00ff00ff
    s_mov_b32 s5, 0x00ff00ff
    s_mov_b32 s6, -1
    s_mov_b32 s7, 0
    s_mov_b32 s{sCH}, {CH}""")
    def kv_prefetch():
        a = e.lab("Lk")
        if PF_LATE != 2: e(f"s_cmp_eq_u32 s{sW}, 2\ns_cbranch_scc1 {a}")
        e(f"buffer_load_dwordx4 v[56:59], v2, {srd(SWS)}, s{sKO} offen sc1\nbuffer_load_dwordx4 v[60:63], v2, {srd(SWS)}, s{sKO} offen offset:1024 sc1\n{a}:")
        e(f"buffer_load_dwordx4 v[52:55], v2, {srd(SWS)}, s{sVO} offen sc1")
        e(f"s_add_u32 s{sKO}, s{sKO}, {64*8192}\ns_add_u32 s{sVO}, s{sVO}, {64*8192}")
    def kv_store():
        a = e.lab("Lv")
        e(f"v_lshrrev_b32 v9, 1, v2\ns_mov_b64 exec, s[6:7]\nbuffer_store_dwordx2 v[48:49], v9, {srd(SWS)}, s{sVMO} offen sc1\ns_cmp_lg_u32 s{sW}, 2\ns_mov_b64 exec, -1\ns_cbranch_scc1 {a}")
        e(f"v_and_b32 v10, 0x70, v2\nv_and_b32 v9, 0x180, v9\nv_or_b32 v9, v9, v10")
        e(f"s_mov_b64 exec, s[4:5]\nbuffer_store_dwordx4 v[56:59], v9, {srd(SWS)}, s{sKMO} offen sc1\nbuffer_store_dwordx4 v[60:63], v9, {srd(SWS)}, s{sKMO} offen offset:512 sc1")
        e(f"s_mov_b64 exec, -1\n{a}:\ns_add_u32 s{sKMO}, s{sKMO}, 131072\ns_add_u32 s{sVMO}, s{sVMO}, 131072")
    def trd(t, b):
        r = 64 + 4 * (4 * b + t)
        e(f"ds_read_b64_tr_b16 v[{r}:{r+1}], v{TA[t]} offset:{b*4096}\nds_read_b64_tr_b16 v[{r+2}:{r+3}], v{TA[t]} offset:{b*4096+256}")
    if stamps: e("s_memrealtime s[46:47]")
    wait_counter(e, f"{C_KV*4}", 128)
    kv_prefetch()
    for r in range(12, 24): e(f"v_mov_b32 v{r}, 0")
    e("s_waitcnt vmcnt(0) lgkmcnt(0)\ns_barrier")
    for b in range(4): trd(0, b)
    e("s_branch L_ch_B\nL_ch_step:")
    stamp(e, 0, stamps)
    e(f"v_mov_b32 v9, 0x3f80\nv_mov_b32 v10, 0x3f800000\ns_add_u32 s{sT0}, s{sCH}, 4096\nv_cndmask_b32 v10, v9, v10, s[40:41]\ns_add_u32 s{sT1}, s{sCH}, 8192\ns_add_u32 s{sT2}, s{sCH}, 12288")
    so = [sCH, sT0, sT1, sT2]
    LL = [f"buffer_load_dwordx4 v[{96+4*i}:{99+4*i}], v1, {srd(SWS)}, s{so[i]} offen sc1" for i in range(4)]
    XL = [f"buffer_load_dwordx4 v[{112+4*i}:{115+4*i}], v44, {srd(SWS)}, s{so[i]} offen sc1" for i in range(4)]
    def pre_a():
        e(f"v_xor_b32 v44, 0x4000, v1\nv_add_u32 v44, {CH_MEMX}, v44")
        for d in range(4): e(f"v_cndmask_b32 v{40+d}, 0, v10, s[{32+2*d}:{33+2*d}]\nv_mov_b32 v{32+d}, 0")
        for d in range(4): e(f"v_mov_b32 v{36+d}, v{40+d}")
        for r in range(12, 24): e(f"v_mov_b32 v{r}, 0")
        for d in range(4): e(f"v_permlane32_swap_b32 v{32+d}, v{36+d}")
        if DELAY_A: e(f"s_sleep {DELAY_A}")
        for l in XL: e(l)
        if PF_LATE == 2: kv_prefetch()
    if DELAY_L: e(f"s_sleep {DELAY_L}")
    poll(e, LL, [96 + 4 * i for i in range(4)], pre_a, 7 if PF_LATE == 2 else 4)
    SEL = lambda i: "v[32:35]" if i % 2 else "v[40:43]"
    for i in range(8): e(f"v_mfma_f32_16x16x32_bf16 v[{64+4*i}:{67+4*i}], {SEL(i)}, v[{96+4*(i//2)}:{99+4*(i//2)}], 0")
    poll(e, XL, [112 + 4 * i for i in range(4)], None, 3 if PF_LATE == 2 else 0, issued=True)
    stamp(e, 1, stamps)
    if PF_LATE == 1: kv_prefetch()
    def fin(i):
        d = 64 + 4 * i
        e(f"v_cvt_pk_bf16_f32 v{d}, v{d}, v{d+1}\nv_cvt_pk_bf16_f32 v{d+1}, v{d+2}, v{d+3}\nds_write_b64 v30, v[{d}:{d+1}] offset:{(i//2)*4096+(i%2)*512}")
    for i in range(8):
        e(f"v_mfma_f32_16x16x32_bf16 v[{64+4*i}:{67+4*i}], {SEL(i)}, v[{112+4*(i//2)}:{115+4*(i//2)}], v[{64+4*i}:{67+4*i}]")
        if i == 2: e("s_nop 5")
        if i >= 2: fin(i - 2)
    e(f"s_add_u32 s{sCH}, s{sCH}, {CH_STEP}\ns_nop 0")
    fin(6); e("s_nop 0"); fin(7)
    for b in range(4): trd(0, b)
    e("s_waitcnt lgkmcnt(8)\ns_barrier\nL_ch_B:")
    stamp(e, 10, stamps)
    order = [(t, b) for t in range(4) for b in range(4)]
    for n in range(4, 7): trd(*order[n])
    for n, (t, b) in enumerate(order):
        c = 4 * b + t
        e(f"s_waitcnt lgkmcnt({2*(min(n+6,15)-n)})")
        e(f"v_smfmac_f32_16x16x64_bf16 v[12:15], v[{64+4*c}:{67+4*c}], {WQ(0,c)}, v3")
        if n + 7 < 16: trd(*order[n + 7])
        e(f"v_smfmac_f32_16x16x64_bf16 v[16:19], v[{64+4*c}:{67+4*c}], {WQ(1,c)}, v3")
    stamp(e, 11, stamps)
    e(f"s_add_u32 s{sT0}, s{sXO}, s{sCH}\ns_add_u32 s{sT1}, s{sSCO}, s{sCH}\ns_nop 5")
    for i in range(4): e(f"v_permlane32_swap_b32 v{12+i}, v{16+i}")
    e("v_pk_add_f32 v[12:13], v[12:13], v[16:17]\nv_pk_add_f32 v[14:15], v[14:15], v[18:19]")
    e("v_cvt_pk_bf16_f32 v12, v12, v13\nv_cvt_pk_bf16_f32 v13, v14, v15\nds_write_b64 v24, v[12:13]\ns_waitcnt lgkmcnt(0)\ns_barrier")
    stamp(e, 12, stamps)
    a, b = e.lab("Lq"), e.lab("Lq")
    for ks in range(2):
        for u in range(2): e(f"ds_read_b64_tr_b16 v[{32+4*ks+2*u}:{33+4*ks+2*u}], v25 offset:{ks*512+u*64}")
    e(f"s_cmp_lg_u32 s{sW}, 2\ns_cbranch_scc1 {b}\ns_waitcnt vmcnt(1)")
    for ks in range(2):
        for u in range(2): e(f"ds_read_b64_tr_b16 v[{56+4*ks+2*u}:{57+4*ks+2*u}], v25 offset:{1024+ks*512+u*64}")
    e(f"""{b}:
    s_cmp_eq_u32 s{sS}, 63
    s_cselect_b32 s{sT2}, 3, s{sW}
    s_cmp_eq_u32 s{sT2}, 3
    s_waitcnt lgkmcnt(0)
    s_cbranch_scc1 {a}
    s_waitcnt vmcnt(1)
    v_mfma_f32_16x16x32_bf16 v[44:47], v[56:59], v[32:35], 0
    v_mfma_f32_16x16x32_bf16 v[44:47], v[60:63], v[36:39], v[44:47]
    s_mov_b64 exec, s[4:5]
    s_nop 4""")
    st(e, f"buffer_store_dwordx4 v[44:47], v4, {srd(SWS)}, s{sT0} offen")
    e(f"s_mov_b64 exec, -1\n{a}:")
    stamp(e, 2, stamps)
    def wo_read(q, r):
        cc, tl = q // 2, q % 2
        off = (cc // 2) * 32768 + (cc % 2) * 4096 + tl * 2048
        rr = 31 if off < 65536 else 11
        off %= 65536
        e(f"ds_read_b128 v[{r}:{r+3}], v{rr} offset:{off}\nds_read_b128 v[{r+4}:{r+7}], v{rr} offset:{off+1024}")
    def vphase():
        for c in range(DELAY_C, 16): e(f"v_smfmac_f32_16x16x64_bf16 v[20:23], v[{64+4*c}:{67+4*c}], {WQ(2,c)}, v3")
        for q in range(6): wo_read(q, 64 + 8 * q)
        for i in range(4): e(f"v_mov_b32 v{16+i}, v{20+i}")
        for i in range(4): e(f"v_mov_b32 v{112+i}, 0x3f803f80")
        for i in range(4): e(f"v_permlane32_swap_b32 v{16+i}, v{20+i}")
        for i in range(4): e(f"v_add_f32 v{20+i}, v{16+i}, v{20+i}")
        e(f"v_cvt_pk_bf16_f32 v20, v20, v21\nv_cvt_pk_bf16_f32 v21, v22, v23\nv_mov_b32 v22, 0\nv_mov_b32 v23, 0\ns_cmp_eq_u32 s{sS}, 63\ns_cbranch_scc1 L_ch_F")
    for c in range(DELAY_C): e(f"v_smfmac_f32_16x16x64_bf16 v[20:23], v[{64+4*c}:{67+4*c}], {WQ(2,c)}, v3")
    poll(e, [f"buffer_load_dwordx4 v[{32+4*t}:{35+4*t}], v2, {srd(SWS)}, s{sT1} offen offset:{1024*t} sc1" for t in range(3)], [32, 36, 40], vphase)
    stamp(e, 3, stamps)
    for i in range(12): e(f"v_add_f32_dpp v{32+i}, v{32+i}, v{32+i} row_ror:8 row_mask:0xf bank_mask:0xf")
    e(f"""v_max3_f32 v9, v32, v33, v34
    v_max3_f32 v10, v35, v36, v37
    v_max3_f32 v9, v9, v38, v39
    v_max3_f32 v10, v10, v40, v41
    v_max3_f32 v9, v9, v42, v43
    v_max_f32 v9, v9, v10
    v_mov_b32 v10, v9
    s_add_u32 s{sT0}, s{sLO}, s{sCH}
    s_add_u32 s{sT1}, s{sOO}, s{sCH}
    v_permlane32_swap_b32 v9, v10
    v_max_f32 v9, v9, v10
    v_mov_b32 v10, v9
    s_add_u32 s{sT2}, s{sT1}, 4096
    s_nop 0
    v_permlane16_swap_b32 v9, v10
    v_max_f32 v9, v9, v10
    v_mul_f32 v12, s42, v9
    v_fma_f32 v14, v9, s42, -v29""")
    for i in range(6): e(f"v_pk_fma_f32 v[{32+2*i}:{33+2*i}], v[{32+2*i}:{33+2*i}], s[42:43], v[{12 if i < 4 else 14}:{13 if i < 4 else 15}] op_sel_hi:[1,1,0] neg_lo:[0,0,1] neg_hi:[0,0,1]")
    for i in range(12): e(f"v_exp_f32 v{32+i}, v{32+i}")
    for i in range(6): e(f"v_cvt_pk_bf16_f32 v{44+i}, v{32+2*i}, v{33+2*i}")
    e("""v_mfma_f32_16x16x32_bf16 v[16:19], v[112:115], v[44:47], 0
    v_mfma_f32_16x16x32_bf16 v[12:15], v[52:55], v[44:47], 0
    v_mfma_f32_16x16x32_bf16 v[16:19], v[112:115], v[48:51], v[16:19]
    v_mfma_f32_16x16x32_bf16 v[12:15], v[20:23], v[48:51], v[12:15]
    s_mov_b64 exec, s[4:5]
    s_nop 5
    v_rcp_f32 v16, v16
    s_nop 0
    v_pk_mul_f32 v[12:13], v[12:13], v[16:17] op_sel_hi:[1,0]
    v_pk_mul_f32 v[14:15], v[14:15], v[16:17] op_sel_hi:[1,0]
    v_cvt_pk_bf16_f32 v12, v12, v13
    v_cvt_pk_bf16_f32 v13, v14, v15""")
    st(e, f"buffer_store_dwordx2 v[12:13], v5, {srd(SWS)}, s{sT0} offen")
    e("s_mov_b64 exec, -1")
    stamp(e, 4, stamps)
    if DELAY_E: e(f"s_sleep {DELAY_E}")
    OG = [32, 36, 40, 44, 112, 116, 120, 124]
    def book():
        if not DBG & 1: kv_store()
        a = e.lab("Lc")
        e(f"v_readfirstlane_b32 s{sT0}, v28\ns_add_u32 s{sS}, s{sS}, 1\ns_cmp_ge_u32 s{sT0}, 128\ns_cbranch_scc1 {a}")
        e(f"s_lshr_b32 s{sT0}, s{sS}, 3\ns_lshl_b32 s{sT0}, s{sT0}, 2\ns_add_u32 s{sT0}, s{sT0}, {C_KV*4}")
        wait_counter(e, f"s{sT0}", 128)
        e(f"{a}:")
        if not PF_LATE: kv_prefetch()
        e(f"s_add_u32 s{sT0}, s{sS}, 1\ns_lshr_b32 s{sT0}, s{sT0}, 3\ns_min_u32 s{sT0}, s{sT0}, 7\ns_lshl_b32 s{sT0}, s{sT0}, 2")
        e(f"buffer_load_dword v28, v50, {srd(SDBG)}, s{sT0} offen offset:{C_KV*4} sc1")
        a = e.lab("Lc")
        e(f"s_lshl_b32 s{sT0}, s{sID}, 2\ns_add_u32 s{sT0}, s{sT0}, s{sW}\ns_cmp_lg_u32 s{sT0}, 3\ns_cbranch_scc1 {a}\ns_sub_u32 s{sT0}, s{sS}, 1\nv_mov_b32 v9, s{sT0}")
        e(f"s_mov_b64 exec, 1\nbuffer_store_dword v9, v50, {srd(SDBG)}, 0 offen offset:{C_CH*4} sc1\ns_mov_b64 exec, -1\n{a}:")
    def pre_f():
        for r in range(12, 20): e(f"v_mov_b32 v{r}, 0")
        e(f"v_mov_b32 v48, v20\nv_mov_b32 v49, v21\ns_lshl_b32 s{sT0}, s{sW}, 10\nv_add_u32 v22, {L_RED}, v2\nv_add_u32 v23, s{sT0}, v22\ns_waitcnt lgkmcnt(0)")
    EL = [f"buffer_load_dwordx4 v[{OG[c]}:{OG[c]+3}], v2, {srd(SWS)}, s{sT1 if c < 4 else sT2} offen offset:{1024*(c%4)} sc1" for c in range(8)]
    def proj(spec):
        for q in range(16):
            if spec and q % 2 == 0:
                r = OG[q // 2]
                e(f"s_waitcnt vmcnt({7-q//2})")
                e(f"v_max3_u32 v9, v{r}, v{r+1}, v{r+2}\nv_max_u32 v9, v9, v{r+3}" if q == 0 else f"v_max3_u32 v9, v9, v{r}, v{r+1}\nv_max3_u32 v9, v9, v{r+2}, v{r+3}")
            if q >= 6: e(f"s_waitcnt lgkmcnt({2*(min(q+5,15)-q)})")
            r = 64 + 8 * (q % 6)
            e(f"v_smfmac_f32_16x16x64_bf16 v[{12+4*(q%2)}:{15+4*(q%2)}], v[{OG[q//2]}:{OG[q//2]+3}], v[{r}:{r+7}], v3")
            if q + 6 < 16: wo_read(q + 6, r)
    for l in EL: e(l)
    pre_f()
    proj(True)
    e("v_cmp_eq_u32 vcc, -1, v9\ns_cbranch_vccz L_ch_Eok\ns_add_u32 s87, s87, 1")
    def redo():
        for q in range(6): wo_read(q, 64 + 8 * q)
        for r in range(12, 20): e(f"v_mov_b32 v{r}, 0")
        e("s_waitcnt lgkmcnt(0)")
    poll(e, EL, OG, redo)
    proj(False)
    e("L_ch_Eok:")
    stamp(e, 5, stamps)
    stamp(e, 13, stamps)
    e(f"s_add_u32 s{sT0}, s{sCH}, s{sPL}\ns_add_u32 s{sT1}, s{sCH}, s{sPX}\ns_nop 5")
    for i in range(4): e(f"v_permlane32_swap_b32 v{12+i}, v{16+i}")
    e("v_pk_add_f32 v[12:13], v[12:13], v[16:17]\nv_pk_add_f32 v[14:15], v[14:15], v[18:19]\nds_write_b128 v23, v[12:15]")
    a, b = e.lab("Lr"), e.lab("Lr")
    e(f"s_cmp_ge_u32 s{sW}, 2\ns_waitcnt lgkmcnt(0)\ns_barrier\ns_cbranch_scc1 {a}")
    stamp(e, 14, stamps)
    for p in range(4): e(f"ds_read_b128 v[{32+4*p}:{35+4*p}], v22 offset:{1024*p}")
    e(f"s_cmp_eq_u32 s{sW}, 0\ns_waitcnt lgkmcnt(2)\nv_pk_add_f32 v[32:33], v[32:33], v[36:37]\nv_pk_add_f32 v[34:35], v[34:35], v[38:39]\ns_waitcnt lgkmcnt(1)")
    e("v_pk_add_f32 v[32:33], v[32:33], v[40:41]\nv_pk_add_f32 v[34:35], v[34:35], v[42:43]\ns_waitcnt lgkmcnt(0)\nv_pk_add_f32 v[32:33], v[32:33], v[44:45]\nv_pk_add_f32 v[34:35], v[34:35], v[46:47]")
    e(f"v_cvt_pk_bf16_f32 v32, v32, v33\nv_cvt_pk_bf16_f32 v33, v34, v35\ns_cbranch_scc1 {b}")
    st(e, f"buffer_store_dwordx2 v[32:33], v30, {srd(SWS)}, s{sT0} offen")
    e(f"s_branch {a}\n{b}:\nbuffer_store_dwordx2 v[32:33], v30, {srd(SWS)}, s{sT1} offen sc1\n{a}:")
    stamp(e, 15, stamps)
    book()
    if stamps:
        a = e.lab("Lt")
        e(f"s_memtime s[100:101]\ns_waitcnt lgkmcnt(0)\ns_cmp_lg_u32 s{sW}, {SWAVE}\ns_cbranch_scc1 {a}")
        for k in range(7): e(f"v_mov_b32 v{32+k}, s{88+2*k}")
        e(f"v_mov_b32 v39, s87\ns_lshl_b32 s{sT0}, s{sID}, 6\ns_add_u32 s{sT0}, s{sT0}, s{sS}\ns_lshl_b32 s{sT0}, s{sT0}, 5\ns_add_u32 s{sT0}, s{sT0}, {STAMP}\ns_mov_b64 exec, 1")
        e(f"buffer_store_dwordx4 v[32:35], v50, {srd(SWS)}, s{sT0} offen\nbuffer_store_dwordx4 v[36:39], v50, {srd(SWS)}, s{sT0} offen offset:16\ns_mov_b64 exec, -1\n{a}:")
    e("s_branch L_ch_step\nL_ch_F:\nv_mov_b32 v48, v20\nv_mov_b32 v49, v21")
    kv_store()
    if stamps:
        e(f"s_memrealtime s[48:49]\ns_waitcnt lgkmcnt(0)\nv_mov_b32 v32, s44\nv_mov_b32 v33, s46\nv_mov_b32 v34, s48\ns_lshl_b32 s{sT0}, s{sID}, 11\ns_add_u32 s{sT0}, s{sT0}, {STAMP}\nbuffer_store_dwordx4 v[32:35], v50, {srd(SWS)}, s{sT0} offen")
    e("s_endpgm")
```

```python
NAME = "gated_mix__memory_aug_recurrent_mem_tr__grouped_kv_mqa__prompt"
KX, VT, QX, KM, VMT = 0x0, 0x1000000, 0x2000000, 0x3000000, 0x3400000
QB, KB, VBT, GATE = 0x3800000, 0x3C00000, 0x3C20000, 0x3C40000
OXB = 0x4000000
CH = 0x6000000
CH_STEP, CH_MEML, CH_MEMX, CH_O, CH_SC, CH_USED = 0x40000, 0, 0x8000, 0x10000, 0x20000, 0x38000
STAMP = 0x8000000
XCH = 0x9000000
WCNT = 0x3C50000
C_KV, C_G, C_KVB, C_QB, C_CH, C_Q = 16, 24, 25, 32, 40, 48
SX, SMEM0, SWQ, SWK, SWV, SWO, SBWQ, SBWK, SBWV, SBWO, SGW, SOUT, SDBG, SWS = [8 + 4 * i for i in range(14)]
def srd(r): return f"s[{r}:{r+3}]"
class Asm:
    def __init__(s): s.L = []; s.n = 0
    def __call__(s, t):
        for l in t.split("\n"):
            l = l.strip()
            if l: s.L.append(l)
    def lab(s, p="L"):
        s.n += 1; return f"{p}_{s.n}"
    def text(s): return "\n".join(s.L) + "\n"
def header(k): return f".text\n.globl {k}\n.p2align 8\n.type {k},@function\n{k}:"
def desc(k, vg=512, acc=256):
    return (f'.section .rodata,"a"\n.p2align 6\n.amdhsa_kernel {k}\n.amdhsa_next_free_vgpr {vg}\n.amdhsa_next_free_sgpr 102\n'
            f'.amdhsa_accum_offset {acc}\n.amdhsa_group_segment_fixed_size 0\n.amdhsa_kernarg_size 128\n.amdhsa_user_sgpr_count 2\n'
            f'.amdhsa_user_sgpr_kernarg_segment_ptr 1\n.amdhsa_system_sgpr_workgroup_id_x 1\n.end_amdhsa_kernel')
def prologue(e, which):
    for i, (r, off, nb) in enumerate(which): e(f"s_load_dwordx2 s[{r}:{r+1}], s[0:1], {off}")
    e("s_waitcnt lgkmcnt(0)")
    for (r, off, nb) in which: e(f"s_mov_b32 s{r+2}, {nb}\ns_mov_b32 s{r+3}, 0x20000")
ALLSRD = [(SX, 0, 4194304), (SMEM0, 8, 16384), (SWQ, 16, 8388608), (SWK, 24, 8388608), (SWV, 32, 8388608), (SWO, 40, 8388608),
          (SBWQ, 64, 2097152), (SBWK, 72, 65536), (SBWV, 80, 65536), (SBWO, 88, 2097152), (SGW, 96, 2048),
          (SOUT, 104, 4194304), (SDBG, 112, 256), (SWS, 120, 268435456)]

TS = False
def tmark(e, slot, neg=False):
    import common
    if not common.TS: return
    a = e.lab("Lts")
    if slot > 9: e(f"s_cmp_lg_u32 s65, 0\ns_cbranch_scc1 {a}")
    e(f"v_cmp_eq_u32 vcc, 0, v0\ns_mov_b64 exec, vcc\ns_cbranch_execz {a}\ns_memrealtime s[4:5]\ns_waitcnt lgkmcnt(0)\ns_and_b32 s4, s4, 0xffffff")
    if neg: e("s_sub_u32 s4, 0x1000000, s4")
    e(f"v_mov_b32 v126, s4\nv_mov_b32 v127, 0\nbuffer_atomic_umax v126, v127, {srd(SDBG)}, 0 offen offset:{slot*4} sc1\n{a}:\ns_mov_b64 exec, -1")
```

```python
from common import *
gW, gXO, gWO, gWSTEP, gNK, gST, gT0, gT1, gIS, gDEL, gSW = 65, 66, 67, 68, 69, 70, 71, 72, 73, 74, 75
GX, GWS = 92, 96
def setsrd(e, d, s): e(f"s_mov_b64 s[{d}:{d+1}], s[{s}:{s+1}]\ns_mov_b64 s[{d+2}:{d+3}], s[{s+2}:{s+3}]")
def gemm_setup(e, TM, TN, xstride, wstride):
    nx, nw = TM // 32, TN // 32
    rows = 512 // TN
    cpr = TN // 8
    e(f"""v_lshrrev_b32 v40, 3, v0
    s_lshl_b32 s{gT0}, s{gW}, 3
    v_add_u32 v40, s{gT0}, v40
    v_bfe_u32 v41, v40, 1, 3
    v_and_b32 v42, 7, v0
    v_xor_b32 v41, v41, v42
    v_lshlrev_b32 v41, 4, v41
    s_mov_b32 s{gT0}, {xstride}
    v_mul_lo_u32 v40, v40, s{gT0}
    v_add_u32 v40, v40, v41
    s_lshl_b32 s{gT0}, s{gT0}, 5""")
    for q in range(1, nx): e(f"v_add_u32 v{40+q}, s{gT0}, v{39+q}")
    sh = cpr.bit_length() - 1
    e(f"v_lshrrev_b32 v48, {sh}, v0\nv_and_b32 v50, {cpr-1}, v0")
    if TN == 128: e("v_lshlrev_b32 v49, 2, v48")
    else: e("v_bfe_u32 v49, v48, 1, 1\nv_lshlrev_b32 v49, 2, v49")
    e(f"""v_xor_b32 v49, v49, v50
    v_lshlrev_b32 v49, 4, v49
    s_mul_i32 s{gT0}, s{gW}, {rows}
    v_add_u32 v48, s{gT0}, v48
    s_mov_b32 s{gT0}, {wstride}
    v_mul_lo_u32 v48, v48, s{gT0}
    v_add_u32 v48, v48, v49
    s_lshl_b32 s{gWSTEP}, s{gT0}, 6
    s_mul_i32 s{gT0}, s{gT0}, {4*rows}""")
    for q in range(1, nw): e(f"v_add_u32 v{48+q}, s{gT0}, v{47+q}")
    e(f"""v_and_b32 v58, 31, v0
    v_bfe_u32 v59, v0, 1, 3
    v_lshrrev_b32 v60, 5, v0
    v_xor_b32 v59, v59, v60
    s_lshr_b32 s{gT0}, s{gW}, 1
    s_mul_i32 s{gT0}, s{gT0}, {TM*64}
    v_lshl_add_u32 v58, v58, 7, s{gT0}""")
    for sub in range(4): e(f"v_xor_b32 v61, {2*sub}, v59\nv_lshl_add_u32 v{52+sub}, v61, 4, v58")
    e(f"""v_bfe_u32 v58, v0, 2, 2
    v_lshl_add_u32 v60, v60, 3, v58
    v_mul_u32_u24 v60, {TN*2}, v60
    v_bfe_u32 v61, v0, 4, 1
    v_lshl_add_u32 v60, v61, 5, v60
    v_and_b32 v61, 3, v0
    v_lshl_add_u32 v60, v61, 3, v60
    v_add_u32 v60, {TM*128}, v60
    s_and_b32 s{gT0}, s{gW}, 1
    s_mul_i32 s{gT0}, s{gT0}, {TN//64}""")
    if TN == 64: e("v_lshrrev_b32 v58, 1, v58")
    for ni in range(TN // 64): e(f"s_add_u32 s{gT1}, s{gT0}, {ni}\nv_xor_b32 v61, s{gT1}, v58\nv_lshl_add_u32 v{56+ni}, v61, 6, v60")
def gemm_main(e, TM, TN, T, NS, flags="", switch=None, hook=None):
    nx, nw, MI, NI = TM // 32, TN // 32, TM // 64, TN // 64
    SB = (TM + TN) * 128
    nd = nx + nw
    def dma(q):
        if q < nx: return f"s_add_u32 m0, s{gIS}, {q*4096}\ns_nop 0\nbuffer_load_dwordx4 v{40+q}, {srd(GX)}, s{gXO} offen {flags} lds"
        return f"s_add_u32 m0, s{gIS}, {TM*128+(q-nx)*4096}\ns_nop 0\nbuffer_load_dwordx4 v{48+q-nx}, {srd(GWS)}, s{gWO} offen lds"
    def adv():
        e(f"s_add_u32 s{gXO}, s{gXO}, 128\ns_add_u32 s{gWO}, s{gWO}, s{gWSTEP}\ns_add_u32 s{gIS}, s{gIS}, {SB}\ns_cmp_ge_u32 s{gIS}, {NS*SB}\ns_cselect_b32 s{gT0}, {NS*SB}, 0\ns_sub_u32 s{gIS}, s{gIS}, s{gT0}")
        if switch:
            a = e.lab("Lsw")
            e(f"s_add_u32 s{gSW}, s{gSW}, 1\ns_cmp_lg_u32 s{gSW}, {switch[0]}\ns_cbranch_scc1 {a}")
            setsrd(e, GWS, switch[1]); e(f"s_mov_b32 s{gWO}, s{switch[2]}\n{a}:")
    e(f"s_lshl_b32 s{gIS}, s{gW}, 10\ns_mov_b32 s{gST}, 0\ns_mov_b32 s{gSW}, 0\ns_barrier")
    for p in range(NS - 1):
        for q in range(nd): e(dma(q))
        adv()
    for r in range(MI * NI * 16): e(f"v_accvgpr_write_b32 a{r}, 0")
    FX = lambda b, mi: 64 + b * 24 + 4 * mi
    FW = lambda b, ni: 64 + b * 24 + 16 + 4 * ni
    def reads(sub):
        b = sub & 1
        R = [f"ds_read_b128 v[{FX(b,mi)}:{FX(b,mi)+3}], v{52+sub} offset:{mi*4096}" for mi in range(MI)]
        for ni in range(NI):
            for u in range(2): R.append(f"ds_read_b64_tr_b16 v[{FW(b,ni)+2*u}:{FW(b,ni)+2*u+1}], v{56+ni} offset:{(16*sub+4*u)*TN*2}")
        return R
    lp = e.lab("Lg")
    e(f"{lp}:\ns_waitcnt vmcnt({nd*(NS-2)})\ns_barrier")
    for r in reads(0): e(r)
    if hook: hook()
    e(f"s_add_u32 s{gST}, s{gST}, {SB}\ns_cmp_ge_u32 s{gST}, {NS*SB}\ns_cselect_b32 s{gT0}, {NS*SB}, 0\ns_sub_u32 s{gST}, s{gST}, s{gT0}\ns_sub_u32 s{gDEL}, {SB}, s{gT0}")
    q = 0
    for sub in range(4):
        b = sub & 1
        fill = reads(sub + 1) if sub < 3 else []
        nr = len(fill)
        per = -(-nd // 4)
        for _ in range(per):
            if q < nd: fill.append(dma(q)); q += 1
        if sub == 3: fill += [f"v_add_u32 v{r}, s{gDEL}, v{r}" for r in range(52, 56 + NI)]
        else: e(fill.pop(0)); nr -= 1
        e(f"s_waitcnt lgkmcnt({1 if sub < 3 else 0})")
        n = MI * NI; k = 0
        for mi in range(MI):
            for ni in range(NI):
                d = (mi * NI + ni) * 16
                x, w = f"v[{FX(b,mi)}:{FX(b,mi)+3}]", f"v[{FW(b,ni)}:{FW(b,ni)+3}]"
                e(f"v_mfma_f32_32x32x16_bf16 a[{d}:{d+15}], {w if T else x}, {x if T else w}, a[{d}:{d+15}]")
                k += 1
                for _ in range(-(-len(fill) // (n - k + 1))): e(fill.pop(0))
    adv()
    e(f"s_sub_u32 s{gNK}, s{gNK}, 1\ns_cmp_lg_u32 s{gNK}, 0\ns_cbranch_scc1 {lp}\ns_waitcnt vmcnt(0)\ns_nop 7")
def pack_tile(e, d, r, scale=None):
    for i in range(16): e(f"v_accvgpr_read_b32 v{r+8+i}, a{d+i}")
    if scale:
        for i in range(8): e(f"v_pk_mul_f32 v[{r+8+2*i}:{r+9+2*i}], v[{r+8+2*i}:{r+9+2*i}], {scale}")
    for i in range(8): e(f"v_cvt_pk_bf16_f32 v{r+i}, v{r+8+2*i}, v{r+9+2*i}")
    e("s_nop 1")
    for p in range(2):
        for i in range(2): e(f"v_permlane32_swap_b32 v{r+4*p+i}, v{r+4*p+2+i}")
```

```python
import sys
from common import *
import chain
from chain import gen_chain, sID, sW, sFAST, sT0, sT1, sT2, sSPIN
WARM, SPEC, MISS, SLOW = 0, 2, 0, 0
def roles(e):
    e(f"""s_cmp_ge_u32 s2, 256
    s_cbranch_scc1 L_exit
    v_lshrrev_b32 v1, 6, v0
    v_and_b32 v0, 63, v0
    s_getreg_b32 s3, hwreg(HW_REG_XCC_ID, 0, 3)
    v_readfirstlane_b32 s{sW}, v1
    s_lshl_b32 s4, s3, 2
    v_mov_b32 v2, 0
    v_mov_b32 v62, 0
    s_cmp_eq_u32 s{sW}, 0
    s_cbranch_scc1 L_role_t""")
    if WARM:
        e(f"s_mul_i32 s5, s2, 3\ns_add_u32 s5, s5, s{sW}\ns_sub_u32 s5, s5, 1\nv_lshlrev_b32 v3, 6, v0\ns_lshl_b32 s6, s5, 13")
        for i in range(2): e(f"buffer_load_dword v255, v3, {srd(SX)}, s6 offen\ns_add_u32 s6, s6, 4096")
        e("s_lshr_b32 s6, s5, 2\ns_mul_i32 s6, s6, 45056\ns_and_b32 s5, s5, 3")
        for m, S in enumerate((SWQ, SWK, SWV, SWO)):
            e(f"s_cmp_lg_u32 s5, {m}\ns_cbranch_scc1 L_warm{m}")
            for i in range(11): e(f"buffer_load_dword v255, v3, {srd(S)}, s6 offen\ns_add_u32 s6, s6, 4096")
            e(f"L_warm{m}:")
    e(f"""s_branch L_role_b0
    L_role_t:
    s_mov_b64 exec, 1
    v_mov_b32 v1, 1
    buffer_atomic_add v1, v2, {srd(SDBG)}, s4 offen sc0 sc1
    s_waitcnt vmcnt(0)
    ds_write_b32 v2, v1
    s_mov_b64 exec, -1
    L_role_b0:
    s_waitcnt lgkmcnt(0)
    s_barrier
    ds_read_b32 v1, v2
    s_waitcnt lgkmcnt(0)
    v_readfirstlane_b32 s7, v1
    s_barrier
    s_lshl_b32 s{sID}, s3, 5
    s_add_u32 s{sID}, s{sID}, s7
    s_xor_b32 s{sID}, s{sID}, {MISS}
    s_mov_b32 s90, 2
    s_cmp_ge_u32 s7, 32
    s_cbranch_scc1 L_role_all
    s_cmp_lt_u32 s{sID}, {64 if SPEC else 0}
    s_cbranch_scc1 L_chain
    s_cmp_lt_u32 s{sID}, {256 if SPEC > 1 else 0}
    s_cbranch_scc1 L_worker
    L_role_all:
    s_getreg_b32 s3, hwreg(HW_REG_XCC_ID, 0, 3)
    v_mov_b32 v2, 0
    s_cmp_lg_u32 s{sW}, 0
    s_cbranch_scc1 L_role_wait
    s_mov_b64 exec, 1
    v_mov_b32 v1, s7
    s_mov_b32 s{sSPIN}, 0
    L_role_poll:
    buffer_load_dwordx4 v[4:7], v2, {srd(SDBG)}, 0 offen sc1
    buffer_load_dwordx4 v[8:11], v2, {srd(SDBG)}, 0 offen offset:16 sc1
    s_waitcnt vmcnt(0)
    v_add3_u32 v3, v4, v5, v6
    v_add3_u32 v3, v3, v7, v8
    v_add3_u32 v3, v3, v9, v10
    v_add_u32 v3, v3, v11
    s_add_u32 s{sSPIN}, s{sSPIN}, 1
    v_readfirstlane_b32 s5, v3
    s_cmp_gt_u32 s{sSPIN}, 0x40000
    s_cbranch_scc1 L_role_go
    s_cmp_lt_u32 s5, 256
    s_cbranch_scc1 L_role_poll
    L_role_go:""")
    for i in range(7):
        e(f"s_cmp_gt_u32 s3, {i}\ns_cselect_b32 s5, -1, 0\nv_and_b32 v3, s5, v{4+i}\nv_add_u32 v1, v1, v3")
    e(f"""v_xor_b32 v4, 32, v4
    v_xor_b32 v5, 32, v5
    v_or_b32 v3, v4, v5
    v_mov_b32 v4, v1
    v_mov_b32 v5, v3
    v_mov_b32 v2, 163832
    ds_write_b64 v2, v[4:5]
    s_mov_b64 exec, -1
    L_role_wait:
    s_waitcnt lgkmcnt(0)
    s_barrier
    v_mov_b32 v2, 163832
    ds_read_b64 v[4:5], v2
    s_waitcnt lgkmcnt(0)
    v_readfirstlane_b32 s6, v4
    v_readfirstlane_b32 s5, v5
    s_barrier
    s_cmp_eq_u32 s90, 3
    s_cselect_b32 s4, s{sID}, -1
    s_mov_b32 s90, 0
    s_cmp_eq_u32 s5, 0
    s_cselect_b32 s{sFAST}, 1, 0
    s_mov_b32 s{sID}, s6""")
def build(workers=True, stamps=False, slow=False, tail=False):
    e = Asm()
    K1 = NAME + "_kernel"
    e(f"; @launch {'kernel='+K1+' ' if tail else ''}grid=(256,1,1) block=(256,1,1) lds=163840")
    if tail:
        import tailk
        for l in tailk.launches(): e(l)
    e('.amdgcn_target "amdgcn-amd-amdhsa--gfx950"')
    e(header(K1))
    prologue(e, ALLSRD)
    if stamps: e('s_memrealtime s[70:71]')
    tmark(e, 8, True)
    roles(e)
    if slow or SLOW: e(f"s_mov_b32 s{sFAST}, 0")
    e(f"s_cmp_lg_u32 s4, s{sID}\ns_cbranch_scc1 L_disp\ns_cmp_ge_u32 s{sID}, 64\ns_cbranch_scc1 L_epi_v\ns_branch L_ch_const\nL_disp:\ns_cmp_ge_u32 s{sID}, 64\ns_cbranch_scc1 L_worker\nL_chain:")
    if stamps: e('s_mov_b32 s44, s70')
    gen_chain(e, stamps)
    e("L_worker:")
    if workers:
        import worker
        worker.gen_worker(e)
    e("L_exit:\ns_endpgm")
    if tail: tailk.gen_tail(e)
    e(desc(K1))
    if tail: tailk.descs(e)
    return e.text().replace(f's_xor_b32 s{sID}, s{sID}, 0\n', '')
if __name__ == "__main__":
    open(f"cdna_kernels/{NAME}.s", "w").write(build())
```

```python
from common import *
from gemm import gW, gT0, gT1
from chain import sID, sSPIN
from tailk import w4
zSEG, zHD, zCG, zKS, zA, zM, zPREV, zX = 66, 67, 68, 69, 80, 84, 86, 87
zOK, zMK, zSIG, zNX = 91, 76, 79, 88
START, ROUND, CH0, CHS = [133, 106, 106, 106, 128, 128], 6.0, 25, 3.0
def schedule():
    free, masks = [t + 7 for t in START], [0] * 6
    for sg in range(64):
        k = min(range(6), key=lambda i: (max(free[i], CH0 + CHS * sg), free[i]))
        masks[k] |= 1 << sg; free[k] = max(free[k], CH0 + CHS * sg) + ROUND
    return masks
STAMP_FN = None
BACK = 1
def spin(e, load, test):
    a, b = e.lab("Lz"), e.lab("Lz")
    e(f"s_mov_b32 s{sSPIN}, 0\n{a}:\n{load}\ns_waitcnt vmcnt(0)\ns_add_u32 s{sSPIN}, s{sSPIN}, 1\ns_cmp_gt_u32 s{sSPIN}, 0x40000\ns_cbranch_scc1 {b}")
    test(b)
    e(f"s_sleep {BACK}\ns_branch {a}\n{b}:")
def wait_ws(e, so, target):
    spin(e, f"buffer_load_dword v3, v188, {srd(SWS)}, s{so} offen sc1", lambda b: e(f"v_readfirstlane_b32 s{gT0}, v3\ns_cmp_ge_u32 s{gT0}, {target}\ns_cbranch_scc1 {b}"))
def fin_issue(e):
    e(f"""s_lshl_b32 s{zA}, s{zPREV}, 2
    s_add_u32 s{zA}, s{zA}, s{zCG}
    s_lshl_b32 s{zA}, s{zA}, 18
    s_lshl_b32 s{zA+1}, s{zKS}, 2
    s_add_u32 s{zA+1}, s{zA+1}, s{gW}
    s_lshl_b32 s{zA+2}, s{zA+1}, 10
    s_add_u32 s{zA}, s{zA}, s{zA+2}
    s_add_u32 s{zA}, s{zA}, {XCH}""")
    for k in range(8): e(f"buffer_load_dwordx4 v[{140+4*k}:{143+4*k}], v189, {srd(SWS)}, s{zA} offen sc1\ns_add_u32 s{zA}, s{zA}, 32768")
    e(f"""s_lshl_b32 s{zX}, s{zPREV}, 16
    s_and_b32 s{zA+2}, s{zA+1}, 1
    s_lshl_b32 s{zA+2}, s{zA+2}, 15
    s_add_u32 s{zX}, s{zX}, s{zA+2}
    s_lshr_b32 s{zA+1}, s{zA+1}, 1
    s_lshl_b32 s{zA+1}, s{zA+1}, 5
    s_add_u32 s{zX}, s{zX}, s{zA+1}
    s_lshl_b32 s{zA+1}, s{zCG}, 9
    s_add_u32 s{zX}, s{zX}, s{zA+1}""")
def fin_sum(e):
    for (x, y) in ((0, 1), (2, 3), (4, 5), (6, 7), (0, 2), (4, 6), (0, 4)):
        for i in range(2): e(f"v_pk_add_f32 v[{140+4*x+2*i}:{141+4*x+2*i}], v[{140+4*x+2*i}:{141+4*x+2*i}], v[{140+4*y+2*i}:{141+4*y+2*i}]")
    e(f"v_cvt_pk_bf16_f32 v140, v140, v141\nv_cvt_pk_bf16_f32 v141, v142, v143\nbuffer_store_dwordx2 v[140:141], v191, {srd(SOUT)}, s{zX} offen")
def xc_addr(e, d, sg): e(f"s_lshl_b32 s{d}, s{sg}, 2\ns_add_u32 s{d}, s{d}, s{zCG}\ns_lshl_b32 s{d}, s{d}, 2\ns_add_u32 s{d}, s{d}, {WCNT}")
def sig(e):
    a = e.lab("Lz")
    e(f"s_cmp_lg_u32 s{gW}, 0\ns_cbranch_scc1 {a}")
    xc_addr(e, gT0, zPREV)
    e(f"v_mov_b32 v3, 1\ns_mov_b64 exec, 1\nbuffer_atomic_add v3, v188, {srd(SWS)}, s{gT0} offen sc1\ns_mov_b64 exec, -1\n{a}:")
def pop(e, d): e(f"s_ff1_i32_b64 s{d}, s[{zMK}:{zMK+1}]\ns_bitset0_b64 s[{zMK}:{zMK+1}], s{d}")
def gen_stream(e):
    e(f"""s_sub_u32 s{gT0}, s{sID}, 64
    s_lshr_b32 s{zSEG}, s{gT0}, 5
    s_and_b32 s{zCG}, s{gT0}, 3
    s_bfe_u32 s{zKS}, s{gT0}, 0x30002
    s_lshl_b32 s{zHD}, s{zKS}, 2
    s_add_u32 s{zHD}, s{zHD}, s{gW}
    v_mov_b32 v188, 0
    v_lshlrev_b32 v189, 4, v0
    v_lshrrev_b32 v1, 5, v0
    v_and_b32 v2, 31, v0
    v_lshlrev_b32 v2, 4, v2
    v_lshl_add_u32 v1, v1, 11, v2
    v_lshrrev_b32 v2, 2, v0
    v_and_b32 v3, 3, v0
    v_lshlrev_b32 v3, 3, v3
    v_lshl_add_u32 v2, v2, 9, v3
    s_barrier""")
    e(f"s_mul_i32 s{zA+1}, s{gW}, 40960\nv_add_u32 v2, s{zA+1}, v2\ns_lshl_b32 s{zA}, s{zHD}, 18\ns_lshl_b32 s{zA+2}, s{zCG}, 9\ns_add_u32 s{zA}, s{zA}, s{zA+2}")
    def wissue(c):
        if c == 8: e(f"s_lshl_b32 s{zA}, s{zHD}, 16\ns_add_u32 s{zA}, s{zA}, s{zA+2}")
        e(f"s_add_u32 m0, s{zA+1}, {(c % 5) * 8192}\ns_nop 0")
        for i in range(8): e(f"buffer_load_dwordx4 v1, {srd(SWO if c < 8 else SBWO)}, s{zA} offen lds\ns_add_u32 m0, m0, 1024\ns_add_u32 s{zA}, s{zA}, 4096")
    for c in range(5): wissue(c)
    for c in range(10):
        e(f"s_waitcnt vmcnt({8 * (min(c + 4, 9) - c)})")
        for nt in range(16):
            r = (nt * 4 + c // 2) * 4 + 2 * (c % 2) if c < 8 else 192 + nt * 4 + 2 * (c % 2)
            e(f"ds_read_b64_tr_b16 {'a' if c < 8 else 'v'}[{r}:{r+1}], v2 offset:{(c % 5) * 8192 + nt * 32}")
        e("s_waitcnt lgkmcnt(0)")
        if c + 5 < 10: wissue(c + 5)
    for k, m in enumerate(schedule()):
        e(f"s_cmp_eq_u32 s{zSEG}, {k}\ns_cselect_b32 s{zMK}, {m & 0xffffffff}, s{zMK}\ns_cselect_b32 s{zMK+1}, {m >> 32}, s{zMK+1}")
    e(f"""s_flbit_i32_b64 s{zA}, s[{zMK}:{zMK+1}]
    s_sub_u32 s{zA}, 63, s{zA}
    s_lshl_b32 s{zA}, s{zA}, 2
    s_add_u32 s{zA}, s{zA}, s{zCG}
    s_lshl_b32 s{zA}, s{zA}, 5
    s_add_u32 s{zA}, s{zA}, s{zHD}
    s_lshl_b32 s{zA}, s{zA}, 13
    s_add_u32 s{zA}, s{zA}, {XCH}""")
    for i in range(4): e(f"v_mov_b32 v{4+i}, -1")
    for i in range(8): e(f"buffer_store_dwordx4 v[4:7], v189, {srd(SWS)}, s{zA} offen sc1\ns_add_u32 s{zA}, s{zA}, 1024")
    tmark(e, 15)
    pop(e, zSEG)
    e("v_and_b32 v191, 15, v0\nv_lshlrev_b32 v191, 11, v191\nv_lshrrev_b32 v2, 4, v0\nv_lshl_add_u32 v191, v2, 3, v191")
    e(f"v_lshlrev_b32 v190, 3, v0\ns_lshl_b32 s{gT0}, s{gW}, 11\ns_add_u32 s{gT0}, s{gT0}, 131072\nv_add_u32 v190, s{gT0}, v190")
    def allq(b):
        e("v_min3_u32 v4, v4, v5, v6\nv_min3_u32 v8, v8, v9, v10\nv_min3_u32 v4, v4, v7, v8\nv_min_u32 v4, v4, v11\ns_nop 0")
        e(f"v_readfirstlane_b32 s{gT0}, v4\ns_cmp_ge_u32 s{gT0}, 32\ns_cbranch_scc1 {b}")
    spin(e, f"buffer_load_dwordx4 v[4:7], v188, {srd(SDBG)}, 0 offen offset:{C_Q*4} sc1\nbuffer_load_dwordx4 v[8:11], v188, {srd(SDBG)}, 0 offen offset:{C_Q*4+16} sc1", allq)
    def allkv(b):
        e("v_min3_u32 v4, v4, v5, v6\nv_min3_u32 v8, v8, v9, v10\nv_min3_u32 v4, v4, v7, v8\nv_min_u32 v4, v4, v11\ns_nop 0")
        e(f"v_readfirstlane_b32 s{gT0}, v4\ns_cmp_ge_u32 s{gT0}, 128\ns_cbranch_scc1 {b}")
    spin(e, f"buffer_load_dwordx4 v[4:7], v188, {srd(SDBG)}, 0 offen offset:{C_KV*4} sc1\nbuffer_load_dwordx4 v[8:11], v188, {srd(SDBG)}, 0 offen offset:{C_KV*4+16} sc1", allkv)
    e(f"s_barrier\ns_mov_b32 s{zPREV}, -1\ns_mov_b32 s{zOK}, 0\nL_z_seg:")
    def prog(b):
        e(f"v_readfirstlane_b32 s{gT0}, v8\ns_cmp_ge_u32 s{gT0}, s{zX}\ns_cbranch_scc1 {b}")
    def mid():
        a, c = e.lab("Lz"), e.lab("Lz")
        e(f"s_mov_b32 s{zSIG}, s{zPREV}\ns_cmp_lg_u32 s{zOK}, 0\ns_cbranch_scc1 {a}\ns_cmp_eq_u32 s{zPREV}, -1\ns_cbranch_scc1 {c}\ns_waitcnt vmcnt(0)\ns_barrier")
        sig(e)
        xc_addr(e, zX, zPREV); wait_ws(e, zX, 8)
        e(f"s_mov_b32 s{zSIG}, s{zA+2}"); fin_issue(e); e(f"s_mov_b32 s{zA+2}, s{zSIG}\ns_waitcnt vmcnt(0)"); fin_sum(e)
        e(f"s_mov_b32 s{zPREV}, -1\n{c}:\ns_mov_b32 s{zSIG}, -1\ns_lshl_b32 s{zX}, s{zSEG}, 2\ns_add_u32 s{zX}, s{zX}, {WCNT+1024}")
        wait_ws(e, zX, 4)
        e(f"s_cmp_lt_u32 s{zSEG}, 60\ns_cselect_b32 s{zX}, 2, -1\ns_add_u32 s{zX}, s{zX}, s{zSEG}")
        spin(e, f"buffer_load_dwordx2 v[8:9], v188, {srd(SDBG)}, 0 offen offset:{C_CH*4} sc1", prog)
        e(f"""{a}:
        v_mul_u32_u24 v7, 10240, v2
        v_lshrrev_b32 v3, 4, v0
        v_lshl_add_u32 v7, v3, 3, v7
        s_mul_i32 s{zX}, s{zSEG}, {32*10240}
        s_lshl_b32 s{gT1}, s{zHD}, 6
        s_add_u32 s{zX}, s{zX}, s{gT1}
        s_add_u32 s{zX}, s{zX}, {OXB+8192}
        s_add_u32 s{gT1}, s{zX}, {16*10240}""")
        for qt in range(2):
            for hf in range(2): e(f"buffer_load_dwordx2 v[{164+4*qt+2*hf}:{165+4*qt+2*hf}], v7, {srd(SWS)}, s{gT1 if qt else zX} offen offset:{32*hf} sc1")
    def post():
        a = e.lab("Lz")
        for r in range(4): e(f"ds_write_b64 v190, v[{164+2*r}:{165+2*r}] offset:{512*r}")
        e(f"s_cmp_eq_u32 s{zSIG}, -1\ns_cbranch_scc1 {a}\ns_barrier")
        sig(e)
        e(f"v_lshrrev_b32 v3, 4, v0\n{a}:")
    w4(e, zSEG, zHD, zA, zM, mid=mid, keep=True, post=post, late=sSPIN)
    pop(e, zNX)
    e(f"s_lshl_b32 s{gT0}, s{zNX}, 2\ns_add_u32 s{gT0}, s{gT0}, {WCNT+1024}")
    xc_addr(e, gT1, zPREV)
    e(f"buffer_load_dword v8, v188, {srd(SWS)}, s{gT1} offen sc1\nbuffer_load_dword v9, v188, {srd(SWS)}, s{gT0} offen sc1\nbuffer_load_dwordx2 v[10:11], v188, {srd(SDBG)}, 0 offen offset:{C_CH*4} sc1")
    for r in range(4): e(f"ds_read_b64 v[{172+2*r}:{173+2*r}], v190 offset:{512*r}")
    e(f"s_lshl_b32 s{gT0}, s{gW}, 15\nv_add_u32 v1, s{gT0}, v189\ns_lshl_b32 s{gT0}, s{gW}, 13\nv_add_u32 v2, s{gT0}, v189\nv_add_u32 v3, 0x10000, v2\ns_waitcnt lgkmcnt(0)")
    for half in range(2):
        for p in range(5):
            for nt in range(8 * half, 8 * half + 8):
                for qt in range(2):
                    d = 12 + (nt * 2 + qt) * 4
                    A = f"a[{(nt*4+p)*4}:{(nt*4+p)*4+3}]" if p < 4 else f"v[{192+nt*4}:{195+nt*4}]"
                    B = 140 + 16 * qt + 4 * p if p < 4 else 172 + 4 * qt
                    e(f"v_mfma_f32_16x16x32_bf16 v[{d}:{d+3}], {A}, v[{B}:{B+3}], {'0' if p == 0 else f'v[{d}:{d+3}]'}")
                    if half == 1 and p in (1, 2) and qt == 1:
                        sl = (p - 1) * 8 + nt - 8
                        e(f"ds_write_b128 v1, v[{12+4*sl}:{15+4*sl}] offset:{1024*sl}")
    for sl in range(16, 32): e(f"ds_write_b128 v1, v[{12+4*sl}:{15+4*sl}] offset:{1024*sl}")
    n1, n2 = e.lab("Lz"), e.lab("Lz")
    e(f"""s_waitcnt vmcnt(0)
    v_readfirstlane_b32 s{gT0}, v9
    v_readfirstlane_b32 s{gT1}, v10
    s_add_u32 s{zX}, s{zNX}, 2
    s_cmp_ge_u32 s{gT1}, s{zX}
    s_cselect_b32 s{gT0}, s{gT0}, 0
    s_cmp_ge_u32 s{gT0}, 4
    s_cselect_b32 s{gT0}, 1, 0
    v_mov_b32 v9, s{gT0}
    v_readfirstlane_b32 s{gT0}, v8
    ds_write_b32 v188, v9 offset:{0}
    s_cmp_eq_u32 s{zPREV}, -1
    s_cbranch_scc1 {n1}
    s_cmp_ge_u32 s{gT0}, 8
    s_cbranch_scc1 {n2}""".replace("ds_write_b32 v188, v9 offset:0", f"s_lshl_b32 s{zX}, s{gW}, 2\ns_add_u32 s{zX}, s{zX}, 147456\nv_mov_b32 v10, s{zX}\nds_write_b32 v10, v9"))
    xc_addr(e, zX, zPREV); wait_ws(e, zX, 8)
    e(f"v_add_u32 v3, 0x10000, v2\n{n2}:")
    fin_issue(e)
    e(f"""{n1}:
    s_lshl_b32 s{zA}, s{zSEG}, 2
    s_add_u32 s{zA}, s{zA}, s{zCG}
    s_lshl_b32 s{zA}, s{zA}, 3
    s_add_u32 s{zA}, s{zA}, s{zKS}
    s_lshl_b32 s{zA}, s{zA}, 2
    s_add_u32 s{zA}, s{zA}, s{gW}
    s_lshl_b32 s{zA}, s{zA}, 13
    s_add_u32 s{zA}, s{zA}, {XCH}
    s_add_u32 s{zA+2}, s{zA}, 4096
    v_mov_b32 v10, 147456
    s_waitcnt lgkmcnt(0)
    s_barrier
    ds_read_b128 v[4:7], v10""")
    for sl in range(8):
        for w in range(4): e(f"ds_read_b128 v[{12+16*sl+4*w}:{15+16*sl+4*w}], v{2 + w//2} offset:{(w%2)*32768 + 1024*sl}")
    for sl in range(8):
        r = 12 + 16 * sl
        e(f"s_waitcnt lgkmcnt({min(15, 4*(7-sl))})")
        for (x, y) in ((0, 4), (8, 12), (0, 8)):
            for i in range(2): e(f"v_pk_add_f32 v[{r+x+2*i}:{r+x+2*i+1}], v[{r+x+2*i}:{r+x+2*i+1}], v[{r+y+2*i}:{r+y+2*i+1}]")
        e(f"buffer_store_dwordx4 v[{r}:{r+3}], v189, {srd(SWS)}, s{zA + 2*(sl//4)} offen offset:{1024*(sl%4)} sc1")
    n1 = e.lab("Lz")
    e(f"v_and_b32 v4, v4, v5\nv_and_b32 v6, v6, v7\nv_and_b32 v4, v4, v6\ns_cmp_eq_u32 s{zPREV}, -1\nv_readfirstlane_b32 s{zOK}, v4\ns_cbranch_scc1 {n1}\ns_waitcnt vmcnt(8)")
    fin_sum(e)
    e(f"{n1}:")
    if STAMP_FN: STAMP_FN(e)
    e(f"s_mov_b32 s{zPREV}, s{zSEG}\ns_mov_b32 s{zSEG}, s{zNX}\ns_cmp_lg_u32 s{zSEG}, -1\ns_cbranch_scc1 L_z_seg\ns_mov_b32 s{sSPIN}, 0\nL_z_last:")
    fin_issue(e)
    e("s_waitcnt vmcnt(0)\nv_max_u32 v7, v140, v141")
    for r in range(142, 172, 2): e(f"v_max3_u32 v7, v7, v{r}, v{r+1}")
    e(f"v_cmp_eq_u32 vcc, -1, v7\ns_add_u32 s{sSPIN}, s{sSPIN}, 1\ns_cmp_gt_u32 s{sSPIN}, 0x40000\ns_cbranch_scc1 L_z_done\ns_cbranch_vccnz L_z_last\nL_z_done:")
    fin_sum(e)
    if STAMP_FN: STAMP_FN(e)
    tmark(e, 14)
```

```python
from common import *
from gemm import *
from chain import f2u, SC_C
K2, K3 = "attn_a_kernel", "out_proj_kernel"
def launches(): return [f"; @launch kernel={K2} grid=(512,1,1) block=(256,1,1) lds=0", f"; @launch kernel={K3} grid=(256,1,1) block=(256,1,1) lds=122880"]
def w4(e, sg, hd, t0, t1, fl="", mid=None, keep=False, post=None, late=None):
    Q = lambda qt, ks: 12 + 16 * qt + 4 * ks
    K = lambda t, ks: 44 + 16 * t + 4 * ks
    V = lambda et: 92 + 4 * et
    VM = lambda et: 124 + 2 * et
    S = lambda qt, t: 140 + 12 * qt + 4 * t
    P = lambda qt: 164 + 6 * qt
    O = lambda qt, et: 12 + 32 * qt + 4 * et
    e(f"""v_lshlrev_b32 v1, 4, v0
    v_and_b32 v2, 15, v0
    v_lshrrev_b32 v3, 4, v0
    v_and_b32 v4, 7, v0
    v_lshlrev_b32 v4, 4, v4
    v_lshl_add_u32 v4, v3, 7, v4
    v_and_b32 v5, 31, v0
    v_lshlrev_b32 v5, 3, v5
    s_lshl_b32 s{t0}, s{sg}, 5
    s_add_u32 s{t0}, s{t0}, s{hd}
    s_lshl_b32 s{t0+1}, s{t0}, 14
    s_lshl_b32 s{t0+2}, s{t0}, 12
    s_add_u32 s{t0+2}, s{t0+2}, {KM}
    s_lshl_b32 s{t0}, s{t0}, 13
    s_add_u32 s{t0}, s{t0}, {QX}
    s_lshl_b32 s{t0+3}, s{sg}, 7
    s_add_u32 s{t0+3}, s{t0+3}, {GATE}
    v_lshlrev_b32 v6, 2, v2""")
    def ld(n, r, va, so, off): e(f"buffer_load_dword{'x'+str(n) if n > 1 else ''} v[{r}:{r+n-1}], v{va}, {srd(SWS)}, s{so} offen offset:{off} {fl}")
    for qt in range(2):
        for ks in range(4): ld(4, Q(qt, ks), 1, t0, 1024 * ks)
        e(f"s_add_u32 s{t0}, s{t0}, 4096")
    for j in range(2):
        for t in range(2):
            for ks in range(2): ld(4, K(t, 2 * j + ks), 1, t0 + 1, 2048 * t + 1024 * ks)
        e(f"s_add_u32 s{t0+1}, s{t0+1}, {8192 if j == 0 else -4096}")
    for qt in range(2): e(f"buffer_load_dword v{10+qt}, v6, {srd(SWS)}, s{t0+3} offen offset:{64*qt} sc1")
    for j in range(2):
        for w in range(4): ld(4, V(4 * j + w), 1, t0 + 1, 1024 * w)
        if j == 0: e(f"s_add_u32 s{t0+1}, s{t0+1}, 8192")
    if mid: mid()
    fl = "sc1"
    ka, kb = e.lab("Lkm"), e.lab("Lkm")
    if late: e(f"s_mov_b32 s{late}, 0\n{ka}:")
    for j in range(2):
        for ks in range(2): ld(4, K(2, 2 * j + ks), 4, t0 + 2, 2048 * j + 512 * ks)
    for j in range(2):
        for w in range(4): ld(2, VM(4 * j + w), 5, t0 + 2, 2048 * j + 1024 + 256 * w)
    if late:
        e(f"s_cmp_lt_u32 s{sg}, 60\ns_cbranch_scc1 {kb}\ns_waitcnt vmcnt(0)\nv_max_u32 v7, v{K(2,0)}, v{K(2,0)+1}")
        for r in list(range(K(2, 0) + 2, K(2, 0) + 16, 2)) + list(range(VM(0), VM(0) + 16, 2)): e(f"v_max3_u32 v7, v7, v{r}, v{r+1}")
        e(f"v_cmp_eq_u32 vcc, -1, v7\ns_add_u32 s{late}, s{late}, 1\ns_cmp_gt_u32 s{late}, 0x40000\ns_cbranch_scc1 {kb}\ns_cbranch_vccnz {ka}\n{kb}:")
    e(f"""v_lshlrev_b32 v7, 3, v3
    v_sub_u32 v7, v2, v7
    v_mov_b32 v8, {f2u(-1e9 * 128 ** 0.5)}
    v_mov_b32 v9, 0xff000000
    s_mov_b32 s{t1}, 0
    s_mov_b32 s{t1+1}, -1
    s_waitcnt vmcnt(12)""")
    if post: post()
    for tt in ((0, 1), (2,)):
      if tt == (2,): e("s_waitcnt vmcnt(8)")
      for ks in range(4):
        for qt in range(2):
            for t in tt:
                d = S(qt, t)
                e(f"v_mfma_f32_16x16x32_bf16 v[{d}:{d+3}], v[{K(t,ks)}:{K(t,ks)+3}], v[{Q(qt,ks)}:{Q(qt,ks)+3}], {'0' if ks == 0 else f'v[{d}:{d+3}]'}")
    e(f"""s_mul_i32 s{t0}, s{sg}, {32*10240}
    s_lshl_b32 s{t0+1}, s{hd}, 8
    s_add_u32 s{t0}, s{t0}, s{t0+1}
    s_add_u32 s{t0}, s{t0}, {OXB}
    s_add_u32 s{t0+1}, s{t0}, {16*10240}
    v_mul_u32_u24 v1, 10240, v2
    v_and_b32 v4, 1, v3
    v_lshl_add_u32 v1, v4, 5, v1
    v_lshrrev_b32 v4, 1, v3
    v_lshl_add_u32 v1, v4, 4, v1
    s_mov_b32 s{t0+2}, {f2u(SC_C)}""")
    for i in range(4): e(f"v_mov_b32 v{176+i}, 0x3f803f80")
    for qt in range(2):
        for t in range(2):
            for i in range(4): e(f"v_cmp_le_i32 vcc, {4*t+i-16*qt}, v7\nv_cndmask_b32 v{S(qt,t)+i}, v8, v{S(qt,t)+i}, vcc")
        for i in range(4): e(f"v_cndmask_b32 v{S(qt,2)+i}, v{S(qt,2)+i}, v9, s[{t1}:{t1+1}]")
        b = S(qt, 0)
        e(f"v_max3_f32 v2, v{b}, v{b+1}, v{b+2}")
        for i in range(3, 11, 2): e(f"v_max3_f32 v2, v2, v{b+i}, v{b+i+1}")
        e(f"v_max_f32 v2, v2, v{b+11}")
        for sw in ("32", "16"): e(f"v_mov_b32 v3, v2\ns_nop 1\nv_permlane{sw}_swap_b32 v2, v3\nv_max_f32 v2, v2, v3")
        e(f"v_mul_f32 v2, s{t0+2}, v2")
        for i in range(12): e(f"v_fma_f32 v{b+i}, v{b+i}, s{t0+2}, -v2")
        for i in range(12): e(f"v_exp_f32 v{b+i}, v{b+i}")
        e("s_nop 0")
        for i in range(6): e(f"v_cvt_pk_bf16_f32 v{P(qt)+i}, v{b+2*i}, v{b+2*i+1}")
    e("s_waitcnt vmcnt(0)")
    for qt in range(2):
        d = 180 + 4 * qt
        e(f"v_mfma_f32_16x16x32_bf16 v[{d}:{d+3}], v[176:179], v[{P(qt)}:{P(qt)+3}], 0")
    for qt in range(2):
        for et in range(8): e(f"v_mfma_f32_16x16x32_bf16 v[{O(qt,et)}:{O(qt,et)+3}], v[{V(et)}:{V(et)+3}], v[{P(qt)}:{P(qt)+3}], 0")
    for qt in range(2):
        d = 180 + 4 * qt
        e(f"v_mfma_f32_16x16x16_bf16 v[{d}:{d+3}], v[176:177], v[{P(qt)+4}:{P(qt)+5}], v[{d}:{d+3}]")
    for qt in range(2):
        for et in range(8): e(f"v_mfma_f32_16x16x16_bf16 v[{O(qt,et)}:{O(qt,et)+3}], v[{VM(et)}:{VM(et)+1}], v[{P(qt)+4}:{P(qt)+5}], v[{O(qt,et)}:{O(qt,et)+3}]")
    for qt in range(2): e(f"v_rcp_f32 v{180+4*qt}, v{180+4*qt}")
    e("s_nop 0")
    for qt in range(2): e(f"v_mul_f32 v{180+4*qt}, v{180+4*qt}, v{10+qt}")
    e("s_nop 3")
    for qt in range(2):
        for ep in range(4):
            a = O(qt, 2 * ep)
            for i in range(4): e(f"v_pk_mul_f32 v[{a+2*i}:{a+2*i+1}], v[{a+2*i}:{a+2*i+1}], v[{180+4*qt}:{181+4*qt}] op_sel_hi:[1,0]")
            d = 140 + 16 * qt + 4 * ep if keep else a
            for i in range(4): e(f"v_cvt_pk_bf16_f32 v{d+i}, v{a+2*i}, v{a+2*i+1}")
            if keep: continue
            e(f"s_nop 1\nv_permlane16_swap_b32 v{a}, v{a+2}\nv_permlane16_swap_b32 v{a+1}, v{a+3}")
            e(f"buffer_store_dwordx4 v[{a}:{a+3}], v1, {srd(SWS)}, s{t0+qt} offen offset:{64*ep} {fl}")
def out_store(e, MI, NI, so):
    for mi in range(MI):
        for ni in range(NI):
            r = 112 + 24 * ((mi * NI + ni) & 1)
            pack_tile(e, (mi * NI + ni) * 16, r)
            for p in range(2): e(f"buffer_store_dwordx4 v[{r+4*p}:{r+4*p+3}], v62, {srd(SOUT)}, s{so} offen offset:{64*ni+32*p}")
        e(f"s_add_u32 s{so}, s{so}, 65536")
def gen_tail(e):
    pick = lambda *r: [x for x in ALLSRD if x[0] in r]
    e(header(K2))
    e("s_cmp_ge_u32 s2, 512\ns_cbranch_scc1 L_k2_exit")
    prologue(e, pick(SWS))
    e("v_lshrrev_b32 v1, 6, v0\nv_and_b32 v0, 63, v0\ns_nop 0\nv_readfirstlane_b32 s3, v1\ns_lshr_b32 s66, s2, 3\ns_and_b32 s67, s2, 7\ns_lshl_b32 s67, s67, 2\ns_add_u32 s67, s67, s3")
    w4(e, 66, 67, 68, 72)
    e("L_k2_exit:\ns_endpgm")
    e(header(K3))
    e("s_cmp_ge_u32 s2, 256\ns_cbranch_scc1 L_k3_exit")
    prologue(e, pick(SWS, SWO, SBWO, SOUT))
    e(f"""v_lshrrev_b32 v1, 6, v0
    v_and_b32 v0, 63, v0
    s_and_b32 s3, s2, 7
    v_readfirstlane_b32 s{gW}, v1
    s_lshr_b32 s4, s2, 3
    s_lshr_b32 s5, s3, 1
    s_lshl_b32 s5, s5, 2
    s_and_b32 s6, s4, 3
    s_add_u32 s5, s5, s6
    s_and_b32 s3, s3, 1
    s_lshl_b32 s3, s3, 3
    s_lshr_b32 s4, s4, 2
    s_add_u32 s4, s4, s3""")
    setsrd(e, GX, SWS); setsrd(e, GWS, SWO)
    gemm_setup(e, 128, 64, 10240, 2048)
    e(f"s_mul_i32 s{gXO}, s5, {128*10240}\ns_add_u32 s{gXO}, s{gXO}, {OXB}\ns_lshl_b32 s{gWO}, s4, 7\ns_mov_b32 s6, s{gWO}\ns_mov_b32 s{gNK}, 80")
    gemm_main(e, 128, 64, 1, 5, switch=(64, SBWO, 6))
    e(f"""v_and_b32 v62, 31, v0
    v_lshlrev_b32 v62, 11, v62
    v_lshrrev_b32 v61, 5, v0
    v_lshl_add_u32 v62, v61, 4, v62
    s_lshl_b32 s5, s5, 18
    s_add_u32 s5, s5, s6
    s_lshr_b32 s3, s{gW}, 1
    s_lshl_b32 s3, s3, 17
    s_add_u32 s5, s5, s3
    s_and_b32 s3, s{gW}, 1
    s_lshl_b32 s3, s3, 6
    s_add_u32 s5, s5, s3""")
    out_store(e, 2, 1, 5)
    e("L_k3_exit:\ns_endpgm")
def descs(e):
    e(desc(K2, 192, 192)); e(desc(K3, 288, 256))
```

```python
from common import *
from gemm import *
from chain import wait_counter, f2u, sID, sSPIN, sT2
import chain
wT, eBASE, eSM, eA, eS1, eS2, ePS, eCNT, eTB, eCT, eSC = 76, 77, 79, 80, 81, 82, 83, 84, 85, 86, 88
KVX = KX
ePEND, eCLR, eINC, ePINC = 91, 87, 100, 101
def flush(e):
    a = e.lab("Lfl")
    e(f"s_cmp_eq_u32 s{ePEND}, -1\ns_cbranch_scc1 {a}\nv_mov_b32 v9, 0\nv_mov_b32 v10, s{ePINC}\ns_mov_b64 exec, 1")
    e(f"buffer_atomic_add v10, v9, {srd(SDBG)}, s{ePEND} offen sc1\ns_mov_b64 exec, -1\ns_mov_b32 s{ePEND}, -1\n{a}:")
def signal(e, idx, S=SDBG):
    a = e.lab("Lsg")
    e(f"s_waitcnt vmcnt(0)\ns_barrier\ns_cmp_lg_u32 s{gW}, 0\ns_cbranch_scc1 {a}\nv_mov_b32 v9, 0\nv_mov_b32 v10, 1\ns_mov_b64 exec, 1")
    e(f"buffer_atomic_add v10, v9, {srd(S)}, {idx} offen sc1\ns_mov_b64 exec, -1\n{a}:")
def epilogue(e, MI, NI, sTB=eTB):
    for mi in range(MI):
        for ni in range(NI):
            r = 112 + 24 * ((mi * NI + ni) & 1)
            pack_tile(e, (mi * NI + ni) * 16, r, f"s[{eSC}:{eSC+1}]")
            e(f"""s_lshr_b32 s{gT0}, s{gW}, 1
            s_mul_i32 s{gT0}, s{gT0}, {MI}
            s_mul_i32 s{gT1}, s{sTB}, {2*MI}
            s_add_u32 s{gT0}, s{gT0}, s{gT1}
            s_add_u32 s{gT0}, s{gT0}, {mi}
            s_mul_i32 s{gXO}, s{gT0}, s{eSM}
            s_add_u32 s{gXO}, s{gXO}, s{eBASE}
            s_and_b32 s{gT0}, s{gW}, 1
            s_lshl_b32 s{gT0}, s{gT0}, 1
            s_lshl_b32 s{gT1}, s{eCT}, 2
            s_add_u32 s{gT0}, s{gT0}, s{gT1}
            s_add_u32 s{gT0}, s{gT0}, {ni}
            s_lshr_b32 s{gT1}, s{gT0}, s{eA}
            s_mul_i32 s{gWO}, s{gT1}, s{eS1}
            s_add_u32 s{gXO}, s{gXO}, s{gWO}
            s_lshl_b32 s{gT1}, s{gT1}, s{eA}
            s_sub_u32 s{gT0}, s{gT0}, s{gT1}
            s_mul_i32 s{gWO}, s{gT0}, s{eS2}
            s_add_u32 s{gXO}, s{gXO}, s{gWO}
            s_add_u32 s{gWO}, s{gXO}, s{ePS}
            buffer_store_dwordx4 v[{r}:{r+3}], v62, {srd(SWS)}, s{gXO} offen sc1
            buffer_store_dwordx4 v[{r+4}:{r+7}], v62, {srd(SWS)}, s{gWO} offen sc1""")
def gate(e):
    e(f"v_lshlrev_b32 v1, 4, v0\nbuffer_load_dwordx4 v[12:15], v1, {srd(SGW)}, 0 offen\nbuffer_load_dwordx4 v[16:19], v1, {srd(SGW)}, 0 offen offset:1024")
    e(f"s_lshl_b32 s{gT0}, s{wT}, 2\ns_add_u32 s{gT0}, s{gT0}, s{gW}")
    for k in range(3):
        e(f"s_add_u32 s{gT1}, s{gT0}, {768*k}\ns_lshl_b32 s{gT1}, s{gT1}, 11")
        e(f"buffer_load_dwordx4 v[{20+8*k}:{23+8*k}], v1, {srd(SX)}, s{gT1} offen\nbuffer_load_dwordx4 v[{24+8*k}:{27+8*k}], v1, {srd(SX)}, s{gT1} offen offset:1024")
    e("s_waitcnt vmcnt(0)")
    for i in range(8): e(f"v_lshlrev_b32 v{44+2*i}, 16, v{12+i}\nv_and_b32 v{45+2*i}, 0xffff0000, v{12+i}")
    for k in range(3):
        e("v_mov_b32 v2, 0")
        for i in range(8): e(f"v_lshlrev_b32 v3, 16, v{20+8*k+i}\nv_and_b32 v4, 0xffff0000, v{20+8*k+i}\nv_fmac_f32 v2, v3, v{44+2*i}\nv_fmac_f32 v2, v4, v{45+2*i}")
        for d in ("row_ror:1", "row_ror:2", "row_ror:4", "row_ror:8"): e(f"s_nop 1\nv_add_f32_dpp v2, v2, v2 {d} row_mask:0xf bank_mask:0xf")
        for sw in ("16", "32"): e(f"v_mov_b32 v3, v2\ns_nop 1\nv_permlane{sw}_swap_b32 v2, v3\nv_add_f32 v2, v2, v3")
        e(f"""v_mul_f32 v2, 0xbfb8aa3b, v2
        v_exp_f32 v2, v2
        s_add_u32 s{gT1}, s{gT0}, {768*k}
        v_add_f32 v2, 1.0, v2
        v_rcp_f32 v2, v2
        s_cmp_lt_u32 s{gT1}, 2048
        s_cselect_b32 s{gT1}, s{gT1}, 0x4000000
        s_lshl_b32 s{gT1}, s{gT1}, 2
        s_add_u32 s{gT1}, s{gT1}, {GATE}
        v_mov_b32 v3, 0
        s_mov_b64 exec, 1
        buffer_store_dword v2, v3, {srd(SWS)}, s{gT1} offen sc1
        s_mov_b64 exec, -1""")
def battn(e):
    from stream import spin
    e(f"s_lshr_b32 s{gXO}, s{eTB}, 3\ns_lshl_b32 s{gXO}, s{gXO}, 2\nv_mov_b32 v9, 0")
    def ok(b):
        n = e.lab("Lb")
        for r, t in ((4, 192), (5, 16), (6, 8)): e(f"v_readfirstlane_b32 s{gT1}, v{r}\ns_cmp_lt_u32 s{gT1}, {t}\ns_cbranch_scc1 {n}")
        e(f"s_branch {b}\n{n}:")
    spin(e, f"buffer_load_dwordx2 v[4:5], v9, {srd(SDBG)}, 0 offen offset:{C_G*4} sc1\nbuffer_load_dword v6, v9, {srd(SDBG)}, s{gXO} offen offset:{C_QB*4} sc1", ok)
    e(f"""s_barrier
    v_lshlrev_b32 v1, 4, v0
    s_lshl_b32 s{gT0}, s{eTB}, 2
    s_add_u32 s{gT0}, s{gT0}, s{eCT}
    s_lshl_b32 s{gT0}, s{gT0}, 2
    s_add_u32 s{gT0}, s{gT0}, s{gW}
    s_lshl_b32 s{gT0}, s{gT0}, 12
    s_add_u32 s{gT0}, s{gT0}, {QB}""")
    for i in range(4): e(f"buffer_load_dwordx4 v[{12+4*i}:{15+4*i}], v1, {srd(SWS)}, s{gT0} offen offset:{1024*i}")
    e(f"v_and_b32 v2, 31, v0\nv_lshlrev_b32 v3, 2, v2\ns_lshl_b32 s{gT0}, s{eTB}, 7\ns_add_u32 s{gT0}, s{gT0}, {GATE}\nbuffer_load_dword v4, v3, {srd(SWS)}, s{gT0} offen sc1")
    Q = lambda h, ks: f"v[{12+8*h+4*ks}:{15+8*h+4*ks}]"
    KF = lambda b, ks: f"v[{28+16*b+4*ks}:{31+16*b+4*ks}]"
    VF = lambda b, u: f"v[{36+16*b+4*u}:{39+16*b+4*u}]"
    S = lambda h: 96 + 16 * h
    def ld(b, k):
        for ks in range(2): e(f"ds_read_b128 {KF(b,ks)}, v92 offset:{2048*k+1024*ks}")
        for u in range(2): e(f"buffer_load_dwordx4 {VF(b,u)}, v1, {srd(SWS)}, s{gXO} offen offset:{1024*u}")
        e(f"s_add_u32 s{gXO}, s{gXO}, 2048")
    if STAMPS == 2: wstamp(e)
    e(f"s_lshl_b32 s{gT1}, s{gW}, 10\ns_mov_b32 m0, s{gT1}\ns_add_u32 s{gXO}, s{gT1}, {KB}")
    for i in range(32): e(f"buffer_load_dwordx4 v1, {srd(SWS)}, s{gXO} offen lds\ns_add_u32 m0, m0, 4096\ns_add_u32 s{gXO}, s{gXO}, 4096")
    e("v_mov_b32 v5, 0xff7fffff\nv_mov_b32 v6, 0xff7fffff\nv_mov_b32 v92, v1")
    for i in range(32): e(f"v_mov_b32 v{128+i}, 0xff7fffff")
    def rdk(b, k):
        for ks in range(2): e(f"ds_read_b128 {KF(b,ks)}, v92 offset:{2048*k+1024*ks}")
    for c in range(4):
        e(f"s_waitcnt vmcnt({24-8*c})\ns_barrier")
        for b in range(2): rdk(b, b)
        lp = e.lab("Lb")
        e(f"s_mov_b32 s{gNK}, 4\n{lp}:")
        for t in range(4):
            cur, prv = (96, 128) if t % 2 == 0 else (128, 96)
            rdk((t + 2) % 4, t + 2)
            e("s_waitcnt lgkmcnt(4)")
            for ks in range(2):
                for h in range(2):
                    d = cur + 16 * h
                    e(f"v_mfma_f32_32x32x16_bf16 v[{d}:{d+15}], {KF(t,ks)}, {Q(h,ks)}, {'0' if ks == 0 else f'v[{d}:{d+15}]'}")
                    for i in range(4): e(f"v_max3_f32 v{5+h}, v{5+h}, v{prv+16*h+8*ks+2*i}, v{prv+16*h+8*ks+2*i+1}")
        e(f"v_add_u32 v92, 8192, v92\ns_sub_u32 s{gNK}, s{gNK}, 1\ns_cmp_lg_u32 s{gNK}, 0\ns_cbranch_scc1 {lp}\ns_waitcnt lgkmcnt(0)")
    if STAMPS == 2: wstamp(e)
    e(f"s_mov_b32 s{gXO}, {VBT}\nv_mov_b32 v92, v1\ns_nop 7")
    for b in range(3): ld(b, b)
    for h in range(2):
        for i in range(8): e(f"v_max3_f32 v{5+h}, v{5+h}, v{128+16*h+2*i}, v{128+16*h+2*i+1}")
        e(f"v_mov_b32 v7, v{5+h}\ns_nop 1\nv_permlane32_swap_b32 v{5+h}, v7\nv_max_f32 v7, v{5+h}, v7")
        for i in range(16): e(f"v_sub_f32 v{128+16*h+i}, 0, v7")
    for i in range(64): e(f"v_accvgpr_write_b32 a{i}, 0")
    for i in range(4): e(f"v_mov_b32 v{8+i}, 0x3f803f80")
    for i in range(8): e(f"v_mov_b32 v{168+i}, 0")
    P = lambda h, u: f"v[{160+8*h+4*u}:{163+8*h+4*u}]"
    def smm(h, b): return [f"v_mfma_f32_32x32x16_bf16 v[{S(h)}:{S(h)+15}], {KF(b,0)}, {Q(h,0)}, v[{128+16*h}:{143+16*h}]",
                           f"v_mfma_f32_32x32x16_bf16 v[{S(h)}:{S(h)+15}], {KF(b,1)}, {Q(h,1)}, v[{S(h)}:{S(h)+15}]"]
    def pv(h, b): return [f"v_mfma_f32_32x32x16_bf16 a[{32*h+16*z}:{32*h+16*z+15}], {VF(b,u) if z == 0 else 'v[8:11]'}, {P(h,u)}, a[{32*h+16*z}:{32*h+16*z+15}]" for z in range(2) for u in range(2)]
    def half(h, mf):
        va = [f"v_exp_f32 v{S(h)+i}, v{S(h)+i}" for i in range(16)] + [f"v_cvt_pk_bf16_f32 v{160+8*h+i}, v{S(h)+2*i}, v{S(h)+2*i+1}" for i in range(8)]
        for i, m in enumerate(mf):
            e(m)
            for x in va[[0, 3, 6, 9, 12, 16][i]:[3, 6, 9, 12, 16, 24][i]]: e(x)
    e("s_waitcnt lgkmcnt(4)")
    for m in smm(0, 0): e(m)
    for i in range(4): e(f"v_mov_b32 v{84+i}, 0\nv_mov_b32 v{88+i}, 0")
    lp = e.lab("Lb")
    e(f"s_mov_b32 s{gNK}, 16\ns_nop 7\n{lp}:")
    for t in range(4):
        half(0, smm(1, t) + pv(1, (t + 3) % 4))
        ld((t + 3) % 4, t + 3)
        e("s_waitcnt vmcnt(6) lgkmcnt(4)")
        half(1, smm(0, (t + 1) % 4) + pv(0, t))
    e(f"v_add_u32 v92, 8192, v92\ns_sub_u32 s{gNK}, s{gNK}, 1\ns_cmp_lg_u32 s{gNK}, 0\ns_cbranch_scc1 {lp}\ns_nop 1")
    for m in pv(1, 3): e(m)
    e(f"""v_sub_f32 v4, 1.0, v4
    v_mul_u32_u24 v2, 10240, v2
    v_lshrrev_b32 v3, 5, v0
    v_lshl_add_u32 v2, v3, 4, v2
    s_mul_i32 s{gT0}, s{eTB}, {32*10240}
    s_lshl_b32 s{gT1}, s{eCT}, 2
    s_add_u32 s{gT1}, s{gT1}, s{gW}
    s_lshl_b32 s{gT1}, s{gT1}, 7
    s_add_u32 s{gT0}, s{gT0}, s{gT1}
    s_add_u32 s{gT0}, s{gT0}, {OXB+8192}
    s_waitcnt vmcnt(0)
    s_nop 7""")
    for h in range(2):
        e(f"v_accvgpr_read_b32 v6, a{32*h+16}\ns_nop 0\nv_rcp_f32 v6, v6\ns_nop 0\nv_mul_f32 v6, v6, v4\nv_mov_b32 v7, v6")
        pack_tile(e, 32 * h, 112 + 24 * h, "v[6:7]")
        for p in range(2): e(f"buffer_store_dwordx4 v[{112+24*h+4*p}:{115+24*h+4*p}], v2, {srd(SWS)}, s{gT0} offen offset:{64*h+32*p} sc1")
STAMPS = False
WARMW = []
def wstamp(e):
    if STAMPS: e(f"s_memrealtime s[4:5]\ns_waitcnt lgkmcnt(0)\nv_mov_b32 v1, s4\nv_mov_b32 v2, 0\nbuffer_store_dword v1, v2, {srd(SWS)}, s90 offen\ns_add_u32 s90, s90, 4".replace("v1", "v93").replace("v2", "v94"))
    if STAMPS: e(f"s_memtime s[4:5]\ns_waitcnt lgkmcnt(0)\nv_mov_b32 v93, s4\nv_mov_b32 v94, 0x100000\nbuffer_store_dword v93, v94, {srd(SWS)}, s90 offen")
def gen_worker(e):
    if STAMPS: e(f"s_sub_u32 s90, s{sID}, 64\ns_lshl_b32 s90, s90, 7\ns_add_u32 s90, s90, {STAMP+0x100000}")
    e(f"s_sub_u32 s{wT}, s{sID}, 64")
    e(f"""s_mov_b32 s{ePEND}, -1
    L_task:
    s_mov_b64 s[{GX}:{GX+1}], s[{SX}:{SX+1}]
    s_mov_b64 s[{GX+2}:{GX+3}], s[{SX+2}:{SX+3}]
    s_mov_b32 s{eCLR}, -1
    s_mov_b32 s{eSC}, 1.0
    s_mov_b32 s{eSC+1}, 1.0
    v_and_b32 v1, 31, v0
    v_and_b32 v2, 15, v0
    v_lshrrev_b32 v3, 5, v0
    v_bfe_u32 v4, v0, 4, 1
    s_mov_b32 s{eINC}, 1
    s_cmp_ge_u32 s{wT}, 576
    s_cbranch_scc1 L_t_notkv
    s_lshr_b32 s{eCT}, s{wT}, 1
    s_mov_b32 s{eTB}, 0
    s_cmp_lt_u32 s{wT}, 128
    s_cbranch_scc1 L_t_kv
    s_mov_b32 s{eINC}, 2
    s_sub_u32 s{eCT}, s{wT}, 512
    s_mov_b32 s{eTB}, 7
    s_cmp_ge_u32 s{wT}, 512
    s_cbranch_scc1 L_t_kv
    s_lshr_b32 s{eTB}, s{wT}, 7
    s_lshl_b32 s{eTB}, s{eTB}, 1
    s_and_b32 s{gT0}, s{wT}, 1
    s_add_u32 s{eTB}, s{eTB}, s{gT0}
    s_sub_u32 s{eTB}, s{eTB}, 1
    s_bfe_u32 s{eCT}, s{wT}, 0x60001
    L_t_kv:
    s_lshl_b32 s{gT0}, s{eTB}, 3
    s_lshr_b32 s{gT1}, s{eCT}, 3
    s_add_u32 s{gT0}, s{gT0}, s{gT1}
    s_lshl_b32 s{gT0}, s{gT0}, 18
    s_and_b32 s{gT1}, s{eCT}, 7
    s_mul_i32 s{gT1}, s{gT1}, 28672
    s_add_u32 s{gT0}, s{gT0}, s{gT1}
    s_lshl_b32 s{gT1}, s{gW}, 10
    s_add_u32 s{gT0}, s{gT0}, s{gT1}
    s_add_u32 s{eCLR}, s{gT0}, {CH}""")
    def par(base, sm, a, s1, s2, ps, cnt):
        e(f"s_mov_b32 s{eBASE}, {base}\ns_mov_b32 s{eSM}, {sm}\ns_mov_b32 s{eA}, {a}\ns_mov_b32 s{eS1}, {s1}\ns_mov_b32 s{eS2}, {s2}\ns_mov_b32 s{ePS}, {ps}")
        if cnt[1]: e(f"s_lshl_b32 s{eCNT}, s{eTB}, 2\ns_add_u32 s{eCNT}, s{eCNT}, {cnt[0]*4}")
        else: e(f"s_mov_b32 s{eCNT}, {cnt[0]*4}")
    e(f"s_mov_b32 s3, 8192\ns_cmp_ge_u32 s{eCT}, 32\ns_cbranch_scc1 L_t_v")
    par(KVX, 64 * 8192, 1, 8192, 1024, 512, (C_KV, 1)); setsrd(e, GWS, SWK)
    e("v_bfe_u32 v5, v0, 2, 1\nv_lshlrev_b32 v62, 11, v5\nv_bfe_u32 v5, v0, 3, 2\nv_lshl_add_u32 v62, v5, 6, v62\nv_and_b32 v5, 3, v0\nv_lshl_add_u32 v62, v5, 4, v62\nv_lshl_add_u32 v62, v3, 8, v62\ns_branch L_gemmT")
    e(f"L_t_v:\ns_sub_u32 s{eCT}, s{eCT}, 32")
    par(KVX + 4096, 64 * 8192, 1, 8192, 2048, 512, (C_KV, 1)); setsrd(e, GWS, SWV)
    e("v_lshlrev_b32 v62, 10, v4\nv_lshl_add_u32 v62, v2, 4, v62\nv_lshl_add_u32 v62, v3, 8, v62\ns_branch L_gemmN")
    e(f"L_t_notkv:\ns_cmp_ge_u32 s{wT}, 640\ns_cbranch_scc1 L_t_notqb\ns_sub_u32 s{gT0}, s{wT}, 576\ns_lshr_b32 s{eTB}, s{gT0}, 3\ns_and_b32 s{eCT}, s{gT0}, 7")
    par(QB, 32 * 2048, 0, 2048, 0, 1024, (C_QB, 1)); setsrd(e, GWS, SBWQ)
    c = f2u(32 ** -0.5 * 1.4426950408889634)
    e(f"s_mov_b32 s{eSC}, {c}\ns_mov_b32 s{eSC+1}, {c}\ns_mov_b32 s3, 2048\nv_lshlrev_b32 v62, 4, v0\ns_branch L_gemmT")
    e(f"L_t_notqb:\ns_cmp_ge_u32 s{wT}, 656\ns_cbranch_scc1 L_t_notkb\ns_sub_u32 s{gT0}, s{wT}, 640\ns_lshr_b32 s{eTB}, s{gT0}, 1\ns_mov_b32 s{eCT}, 0\ns_mov_b32 s3, 64")
    par(KB, 2048, 2, 0, 0x10000000, 1024, (C_KVB, 0))
    e(f"s_and_b32 s{gT0}, s{wT}, 1\ns_cbranch_scc1 L_t_vb"); setsrd(e, GWS, SBWK)
    e("v_bfe_u32 v5, v0, 2, 1\nv_lshl_add_u32 v5, v4, 1, v5\nv_lshlrev_b32 v62, 7, v5\nv_bfe_u32 v5, v0, 3, 1\nv_lshl_add_u32 v62, v5, 6, v62\nv_and_b32 v5, 3, v0\nv_lshl_add_u32 v62, v5, 4, v62\nv_lshl_add_u32 v62, v3, 9, v62\ns_branch L_gemmT")
    e(f"L_t_vb:\ns_mov_b32 s{eBASE}, {VBT}"); setsrd(e, GWS, SBWV)
    e("v_lshlrev_b32 v62, 4, v0\ns_branch L_gemmN")
    e(f"L_t_notkb:\ns_cmp_ge_u32 s{wT}, 912\ns_cbranch_scc1 L_t_attn\ns_sub_u32 s{gT0}, s{wT}, 656\ns_and_b32 s{eTB}, s{gT0}, 7\ns_lshr_b32 s{eCT}, s{gT0}, 3\ns_mov_b32 s3, 8192")
    par(QX, 32 * 8192, 2, 8192, 1024, 512, (C_Q, 1)); setsrd(e, GWS, SWQ)
    e("v_lshlrev_b32 v62, 12, v4\nv_lshl_add_u32 v62, v2, 4, v62\nv_lshl_add_u32 v62, v3, 8, v62")
    for T in (1, 0):
        e(f"L_gemm{'T' if T else 'N'}:\ns_cmp_lt_u32 s{wT}, 128\ns_cbranch_scc1 L_half{T}")
        gemm_setup(e, 256, 128, 2048, "s3")
        e(f"s_lshl_b32 s{gXO}, s{eTB}, 19\ns_lshl_b32 s{gWO}, s{eCT}, 8\ns_mov_b32 s{gNK}, 16")
        gemm_main(e, 256, 128, T, 3, hook=lambda: flush(e))
        if T: e("s_branch L_epi")
    e("s_branch L_epi")
    for T in (1, 0):
        e(f"L_half{T}:")
        gemm_setup(e, 128, 128, 2048, "s3")
        e(f"s_and_b32 s6, s{wT}, 1\ns_lshl_b32 s{gXO}, s6, 18\ns_lshl_b32 s{gWO}, s{eCT}, 8\ns_mov_b32 s{gNK}, 16")
        gemm_main(e, 128, 128, T, 4)
        if T: e("s_branch L_epi")
    e(f"L_epi:\ns_cmp_lg_u32 s90, 2\ns_cbranch_scc1 L_epi_v\ns_mov_b32 s90, 3\ns_branch L_role_all\nL_epi_v:\ns_and_b32 s6, s{wT}, 1")
    e(f"s_cmp_eq_u32 s{eCLR}, -1\ns_cbranch_scc1 L_noclr\nv_lshlrev_b32 v5, 4, v0")
    for i in range(4): e(f"v_mov_b32 v{8+i}, -1")
    for i in range(7): e(f"buffer_store_dwordx4 v[8:11], v5, {srd(SWS)}, s{eCLR} offen sc1\ns_add_u32 s{eCLR}, s{eCLR}, 4096")
    e(f"s_cmp_lg_u32 s{eTB}, 7\ns_cbranch_scc1 L_noclr\ns_sub_u32 s{eCLR}, s{wT}, 512\ns_lshl_b32 s{eCLR}, s{eCLR}, 13\ns_lshl_b32 s{gT0}, s{gW}, 11\ns_add_u32 s{eCLR}, s{eCLR}, s{gT0}\ns_add_u32 s{eCLR}, s{eCLR}, {KM+60*131072}")
    for i in range(2): e(f"buffer_store_dwordx4 v[8:11], v5, {srd(SWS)}, s{eCLR} offen offset:{1024*i} sc1")
    e("L_noclr:")
    e(f"s_cmp_ge_u32 s{wT}, 128\ns_cbranch_scc1 L_epi_full")
    epilogue(e, 2, 2, 6)
    e("s_branch L_epi_done\nL_epi_full:")
    epilogue(e, 4, 2)
    e(f"L_epi_done:\ns_mov_b32 s{ePINC}, s{eINC}\ns_cmp_eq_u32 s{gW}, 0\ns_cselect_b32 s{ePEND}, s{eCNT}, -1\ns_cmp_ge_u32 s{wT}, 192\ns_cbranch_scc1 L_next\ns_waitcnt vmcnt(0)\ns_barrier")
    flush(e)
    e(f"s_branch L_next\nL_t_attn:\ns_waitcnt vmcnt(0)\ns_barrier")
    flush(e)
    e(f"s_cmp_ge_u32 s{wT}, 1168\ns_cbranch_scc1 L_stream\ns_sub_u32 s{gT0}, s{wT}, 912\ns_lshr_b32 s{eTB}, s{gT0}, 2\ns_and_b32 s{eCT}, s{gT0}, 3")
    battn(e)
    e(f"s_lshl_b32 s{eCNT}, s{eTB}, 2\ns_add_u32 s{eCNT}, s{eCNT}, {WCNT+1024}"); signal(e, f"s{eCNT}", SWS)
    e(f"L_next:\ns_cmp_ge_u32 s{wT}, 192\ns_cbranch_scc1 L_nogate")
    gate(e)
    e(f"s_cmp_lg_u32 s{wT}, 0\ns_cbranch_scc1 L_nozero\ns_lshl_b32 s{gT0}, s{gW}, 10\ns_add_u32 s{gT0}, s{gT0}, {WCNT}")
    for i in range(4): e(f"v_mov_b32 v{8+i}, 0")
    e(f"buffer_store_dwordx4 v[8:11], v1, {srd(SWS)}, s{gT0} offen sc1\nL_nozero:")
    e(f"s_mov_b32 s{eCNT}, {C_G*4}"); signal(e, f"s{eCNT}")
    e("L_nogate:")
    wstamp(e)
    e(f"s_add_u32 s{wT}, s{wT}, 192\ns_branch L_task\nL_stream:")
    import stream
    wstamp(e)
    stream.STAMP_FN = wstamp
    stream.gen_stream(e)
```

```python
import sys, common, gen, chain, stream, worker
for i, cfg in enumerate(eval(sys.argv[1])):
    chain.PF_LATE, chain.DELAY_L, chain.DELAY_A, chain.DELAY_C, chain.DELAY_E = cfg[:5]
    for k, v in (cfg[5] if len(cfg) > 5 else {}).items():
        m, n = k.split('.'); setattr(sys.modules[m], n, v)
    open(f"var{i}.s", "w").write(gen.build())
```
